```python
import torch

def _softmax(x, axis=-1):
    return torch.softmax(x, dim=axis)
def _gelu(x):
    return torch.nn.functional.gelu(x, approximate="tanh")
def _silu(x):
    return torch.nn.functional.silu(x)
def _sigmoid(x):
    return torch.sigmoid(x)
def _layernorm(x, axis=-1, eps=1e-5):
    m = x.mean(dim=axis, keepdim=True)
    v = x.var(dim=axis, keepdim=True, unbiased=False)
    return (x - m) / torch.sqrt(v + eps)
def _scatter_add(tgt, idx, src, axis=0):
    return tgt.clone().index_add_(axis, idx, src)
def _segment_sum(src, seg, n):
    out = torch.zeros((n,) + src.shape[1:], dtype=src.dtype)
    return out.index_add_(0, seg, src)
def _pad(x, pw):
    flat = tuple(v for pair in reversed(pw) for v in pair)
    return torch.nn.functional.pad(x, flat)

kernel_name = 'parallel_sum__grouped_kv_mqa__dense_activation_mish__prompt'

def setup_inputs():

    _w = (lambda a: (lambda t: t.to(torch.bfloat16) if t.is_floating_point() else t)(torch.as_tensor(a)))
    def _A_setup():
        B, S, D, H = 1, 2048, 512, 32
        Dh = D // H
        return {
            "x": _w((lambda *s: torch.randn(*s, dtype=torch.bfloat16) * 0.05)(B, S, D)),
            "wq": _w((lambda *s: torch.randn(*s, dtype=torch.bfloat16) * 0.05)(D, H * Dh)),
            "wk": _w((lambda *s: torch.randn(*s, dtype=torch.bfloat16) * 0.05)(D, Dh)),
            "wv": _w((lambda *s: torch.randn(*s, dtype=torch.bfloat16) * 0.05)(D, Dh)),
            "wo": _w((lambda *s: torch.randn(*s, dtype=torch.bfloat16) * 0.05)(H * Dh, D)),
        }
    _A_in = _A_setup()

    def _B_setup():
        B, S, D, F = 1, 2048, 512, 1376
        return {
            "x": _w((lambda *s: torch.randn(*s, dtype=torch.bfloat16) * 0.05)(B, S, D)),
            "w1": _w((lambda *s: torch.randn(*s, dtype=torch.bfloat16) * 0.8)(D, F) * (D ** -0.5)),
            "b1": _w((lambda *s: torch.randn(*s, dtype=torch.bfloat16) * 0.4)(F)),
            "w2": _w((lambda *s: torch.randn(*s, dtype=torch.bfloat16) * 0.4)(F, D) * (F ** -0.5)),
        }
    _B_in = _B_setup()

    return {
        "A_x": _A_in["x"],
        "A_wq": _A_in["wq"],
        "A_wk": _A_in["wk"],
        "A_wv": _A_in["wv"],
        "A_wo": _A_in["wo"],
        "B_x": _B_in["x"],
        "B_w1": _B_in["w1"],
        "B_b1": _B_in["b1"],
        "B_w2": _B_in["w2"],
    }

def reference(A_x, A_wq, A_wk, A_wv, A_wo, B_x, B_w1, B_b1, B_w2):
    def _A_ref(x, wq, wk, wv, wo):
        B, S, D = x.shape
        H = 32
        Dh = D // H
        q = (lambda x, *d: x.permute(*d))((x @ wq).reshape(B, S, H, Dh), 0, 2, 1, 3)
        k = x @ wk
        v = x @ wv
        scores = torch.einsum("bhqd,bkd->bhqk", q, k) * (Dh ** -0.5)
        p = _softmax(scores, axis=-1)
        o = torch.einsum("bhqk,bkd->bhqd", p, v)
        return (lambda x, *d: x.permute(*d))(o, 0, 2, 1, 3).reshape(B, S, H * Dh) @ wo

    def _B_ref(x, w1, b1, w2):
        h = torch.einsum("bsd,df->bsf", x, w1) + b1
        sp = torch.log1p(torch.exp(-torch.abs(h))) + torch.where(h > 0, h, torch.zeros_like(h))
        act = h * torch.tanh(sp)
        return torch.einsum("bsf,fd->bsd", act, w2)

    x = A_x
    xn = _layernorm(x, axis=-1)
    return x + _A_ref(xn, A_wq, A_wk, A_wv, A_wo) + _B_ref(xn, B_w1, B_b1, B_w2)
```

```python
import re


def v(i, n=1):
    return f"v{i}" if n == 1 else f"v[{i}:{i + n - 1}]"


def s(i, n=1):
    return f"s{i}" if n == 1 else f"s[{i}:{i + n - 1}]"


class Asm:
    def __init__(self):
        self.lines = []
        self.uid = 0
        self.vm = []
        self.lg = []

    def __call__(self, text):
        for ln in text.split("\n"):
            ln = ln.strip()
            if ln:
                self.lines.append(ln)

    def label(self, name):
        self.lines.append(name + ":")

    def newlabel(self, base):
        self.uid += 1
        return f"L_{base}_{self.uid}"

    def comment(self, text):
        self.lines.append("; " + text)

    def vmem(self, text, tag=None):
        self(text)
        self.vm.append(tag)

    def lds(self, text, tag=None):
        self(text)
        self.lg.append(tag)

    def vm_reset(self):
        self.vm = []

    def lg_reset(self):
        self.lg = []

    def wait_vm(self, *tags):
        idx = [i for i, t in enumerate(self.vm) if t in tags]
        if not idx:
            return
        n = len(self.vm) - 1 - max(idx)
        assert n <= 63, n
        self(f"s_waitcnt vmcnt({n})")
        self.vm = self.vm[max(idx) + 1:]

    def wait_vm_all(self):
        self("s_waitcnt vmcnt(0)")
        self.vm = []

    def wait_lg(self, *tags):
        idx = [i for i, t in enumerate(self.lg) if t in tags]
        if not idx:
            return
        n = len(self.lg) - 1 - max(idx)
        if n > 15:
            n = 15
            self.lg = self.lg[len(self.lg) - 15:]
        else:
            self.lg = self.lg[max(idx) + 1:]
        self(f"s_waitcnt lgkmcnt({n})")

    def wait_lg_all(self):
        self("s_waitcnt lgkmcnt(0)")
        self.lg = []


TRANS = ("v_exp_", "v_log_", "v_rcp_", "v_rsq_", "v_sqrt_", "v_sin_", "v_cos_")


def _regs(tok):
    tok = tok.strip()
    neg = tok.lstrip("-")
    if neg.startswith("abs(") or neg.startswith("|"):
        neg = neg.replace("abs(", "").replace(")", "").replace("|", "")
    m = re.fullmatch(r"([vsa])(\d+)", neg)
    if m:
        return {(m.group(1), int(m.group(2)))}
    m = re.fullmatch(r"([vsa])\[(\d+):(\d+)\]", neg)
    if m:
        return {(m.group(1), i) for i in range(int(m.group(2)), int(m.group(3)) + 1)}
    if neg == "vcc":
        return {("s", "vcc")}
    if neg in ("vcc_lo", "vcc_hi"):
        return {("s", "vcc")}
    if neg in ("exec", "exec_lo", "exec_hi"):
        return {("s", "exec")}
    if neg == "m0":
        return {("s", "m0")}
    return set()


def _split_ops(rest):
    out, depth, cur = [], 0, ""
    for ch in rest:
        if ch == "[":
            depth += 1
        if ch == "]":
            depth -= 1
        if ch == "," and depth == 0:
            out.append(cur.strip())
            cur = ""
        else:
            cur += ch
    if cur.strip():
        out.append(cur.strip())
    if out:
        parts = out[-1].split()
        out[-1] = parts[0]
        mods = parts[1:]
    else:
        mods = []
    return out, mods


class Ins:
    def __init__(self, text):
        self.text = text
        self.label = None
        self.op = None
        self.kind = "other"
        self.defs = set()
        self.uses = set()
        self.A = self.B = self.C = set()
        self.passes = 0
        self.states = 1
        self.target = None
        self.uncond = False
        t = text.split(";")[0].strip()
        if not t:
            self.kind = "comment"
            self.states = 0
            return
        if t.endswith(":"):
            self.label = t[:-1]
            self.kind = "label"
            self.states = 0
            return
        if t.startswith("."):
            self.kind = "directive"
            self.states = 0
            return
        sp = t.split(None, 1)
        op = self.op = sp[0]
        ops, mods = _split_ops(sp[1]) if len(sp) > 1 else ([], [])
        self.ops, self.mods = ops, mods
        R = [_regs(o) for o in ops]
        allr = lambda a: set().union(*a) if a else set()
        if op == "s_nop":
            self.kind = "nop"
            self.states = int(ops[0], 0) + 1
        elif op in ("s_branch",) or op.startswith("s_cbranch"):
            self.kind = "branch"
            self.target = ops[0]
            self.uncond = op == "s_branch"
        elif op == "s_endpgm":
            self.kind = "end"
        elif op.startswith("v_mfma") or op.startswith("v_smfmac"):
            self.kind = "mfma"
            self.smf = op.startswith("v_smfmac")
            self.defs = R[0]
            self.A, self.B = R[1], R[2]
            if self.smf:
                self.C = R[0]
                self.A = self.A | R[3]
            else:
                self.C = R[3]
            self.uses = self.A | self.B | self.C
            self.sgemm = op.endswith("_f32") and ("x2_" in op or "x4_" in op or "x1_" in op)
            if "32x32x2_f32" in op:
                self.passes = 16
            elif "16x16x4_f32" in op:
                self.passes = 8
            elif "32x32" in op:
                self.passes = 8
            elif "16x16" in op:
                self.passes = 4
            else:
                raise ValueError(op)
        elif op.startswith("v_"):
            self.kind = "valu"
            self.trans = op.startswith(TRANS)
            self.dot = op.startswith("v_dot")
            self.dpp = "_dpp" in op or any(m.startswith(("quad_perm", "row_")) for m in mods)
            self.sdwa = "_sdwa" in op
            self.perm = op.startswith("v_permlane")
            self.rdlane = op.startswith(("v_readlane", "v_readfirstlane"))
            if op.startswith("v_cmp"):
                self.defs = R[0]
                self.uses = allr(R[1:])
            elif self.perm or op.startswith("v_swap"):
                self.defs = R[0] | R[1]
                self.uses = R[0] | R[1]
            elif re.match(r"v_(add|sub|subrev|addc|subb|subbrev)_co_", op):
                self.defs = R[0] | R[1]
                self.uses = allr(R[2:])
            else:
                self.defs = R[0]
                self.uses = allr(R[1:])
                if op.startswith(("v_fmac", "v_dot2c", "v_pk_fmac", "v_writelane")) or self.sdwa or self.dpp:
                    self.uses = self.uses | R[0]
            self.dotC = set()
            if self.dot:
                self.dotC = R[0] if op.startswith("v_dot2c") else R[3]
                self.dotAB = R[1] | R[2]
        elif op.startswith("ds_"):
            self.kind = "ds"
            if op.startswith("ds_read") or "_rtn" in op or op.startswith(("ds_bpermute", "ds_permute", "ds_swizzle")):
                self.defs = R[0]
                self.uses = allr(R[1:])
            else:
                self.uses = allr(R)
        elif op.startswith(("buffer_", "global_")):
            self.kind = "vmem"
            self.dma = "lds" in mods
            self.wide = False
            if op.startswith("buffer_load"):
                if self.dma:
                    self.uses = allr(R) | {("s", "m0")}
                else:
                    self.defs = R[0]
                    self.uses = allr(R[1:])
            elif op.startswith("global_load"):
                self.defs = R[0]
                self.uses = allr(R[1:])
            elif op.startswith(("buffer_store", "buffer_atomic")):
                self.uses = allr(R)
                self.data = R[0]
                self.wide = op.endswith(("x3", "x4"))
                if "atomic" in op and "sc0" in mods:
                    self.defs = R[0]
            elif op.startswith(("global_store", "global_atomic")):
                self.uses = allr(R)
                self.data = R[1]
                self.wide = op.endswith(("x3", "x4"))
            elif op.startswith(("buffer_inv", "buffer_wbl2")):
                pass
            else:
                raise ValueError(op)
        elif op.startswith("s_"):
            self.kind = "salu"
            if op.startswith(("s_cmp", "s_waitcnt", "s_barrier", "s_sleep", "s_setprio", "s_bitcmp")):
                self.uses = allr(R)
            else:
                self.defs = R[0] if R else set()
                self.uses = allr(R[1:])
                if "saveexec" in op:
                    self.defs = self.defs | {("s", "exec")}
        else:
            raise ValueError("unknown instruction: " + text)


def _vg(x):
    return {r for r in x if r[0] in "va"}


def _sg(x):
    return {r for r in x if r[0] == "s"}


def _need(p, c):
    n = 0
    if p.kind == "valu":
        vd, sd = _vg(p.defs), _sg(p.defs)
        if c.kind == "mfma" and vd & c.uses:
            n = max(n, 2)
        if c.kind == "valu":
            if vd & c.uses:
                if c.dpp or c.perm:
                    n = max(n, 2)
                if c.rdlane:
                    n = max(n, 1)
                if p.trans and not c.trans:
                    n = max(n, 1)
                if p.trans and c.trans:
                    n = max(n, 1)
                if p.sdwa:
                    n = max(n, 1)
            if sd & c.uses:
                n = max(n, 4 if c.op.startswith(("v_readlane", "v_writelane")) else 2)
        if c.kind == "vmem" and sd & c.uses:
            n = max(n, 5)
        if c.kind == "salu" and sd & c.uses:
            n = max(n, 1)
        if c.kind == "branch" and ("s", "vcc") in sd and "vcc" in c.op:
            n = max(n, 1)
        if p.dot and (vd & (c.uses | c.defs)):
            if c.kind == "valu" and c.op == p.op and not (vd & c.dotAB):
                pass
            else:
                n = max(n, 3)
        if p.trans and c.kind in ("ds", "vmem") and vd & c.uses:
            n = max(n, 1)
    elif p.kind == "mfma":
        ps = p.passes
        d = p.defs
        if p.sgemm:
            far = {8: 10, 16: 18}[ps]
            if c.kind == "mfma":
                if d & (c.A | c.B):
                    n = max(n, far)
                if d & c.C and c.sgemm and d != c.C:
                    n = max(n, ps)
                if d & c.defs and not (d & c.C):
                    n = max(n, far)
            elif c.kind in ("valu", "ds", "vmem") and d & (c.uses | c.defs):
                n = max(n, far)
        else:
            far = {4: 8, 8: 12, 16: 20}[ps]
            if c.kind == "mfma":
                if d & (c.A | c.B):
                    n = max(n, far)
                if d & c.C:
                    if d == c.C and c.passes == ps and not c.sgemm:
                        pass
                    else:
                        n = max(n, ps + 2)
                elif d & c.defs:
                    if not (d == c.defs and c.passes == ps):
                        n = max(n, ps + 2)
            elif c.kind in ("valu", "ds", "vmem") and d & (c.uses | c.defs):
                n = max(n, far)
            if c.kind == "valu" and _vg(p.C) & c.defs:
                n = max(n, {4: 3, 8: 7, 16: 15}[ps])
    elif p.kind == "salu":
        if ("s", "m0") in p.defs and c.kind == "vmem" and getattr(c, "dma", False):
            n = max(n, 1)
    elif p.kind == "vmem":
        if p.wide and p.data & c.defs:
            n = max(n, 2 if c.kind in ("valu", "mfma") else 1)
    return n


MAXD = 20


def hazard_pass(lines, verbose=True):
    reports = []
    while True:
        ins = [Ins(l) for l in lines]
        lab = {x.label: i for i, x in enumerate(ins) if x.label}
        need = {}

        def succ(i):
            x = ins[i]
            if x.kind == "end":
                return []
            if x.kind == "branch":
                t = [lab[x.target]]
                return t if x.uncond else t + [i + 1]
            return [i + 1] if i + 1 < len(ins) else []

        for i, p in enumerate(ins):
            if p.kind not in ("valu", "mfma", "salu", "vmem"):
                continue
            if p.kind == "salu" and ("s", "m0") not in p.defs:
                continue
            if p.kind == "vmem" and not p.wide:
                continue
            lim = MAXD if p.kind == "mfma" else 5
            seen = {}
            stack = [(k, 0) for k in succ(i)]
            while stack:
                k, dist = stack.pop()
                if dist >= lim or seen.get(k, 99) <= dist:
                    continue
                seen[k] = dist
                c = ins[k]
                if c.op is not None:
                    n = _need(p, c)
                    if n > dist:
                        if need.get(k, (0,))[0] < n - dist:
                            need[k] = (n - dist, i)
                for k2 in succ(k):
                    stack.append((k2, dist + c.states))
        if not need:
            break
        out = []
        first = sorted(need)
        done = set()
        last = -100
        for k in first:
            simple = ins[need[k][1]].kind == "salu"
            if k - last > MAXD or simple:
                done.add(k)
            if not simple:
                last = k
        for i, l in enumerate(lines):
            if i in done:
                n, pi = need[i]
                reports.append(f"  +{n} before [{l}]  after [{lines[pi]}]")
                while n > 0:
                    m = min(n, 16)
                    out.append(f"s_nop {m - 1}")
                    n -= m
            out.append(l)
        lines = out
    if verbose:
        print(f"hazard pass: {len(reports)} pads")
        for r in reports:
            if "m0" in r or "readfirstlane" in r or "s_cmp" in r or "max3" in r or "v_sub_f32" in r:
                continue
            print(r)
    return lines


def render(lines):
    out = []
    for l in lines:
        if l.endswith(":") or l.startswith("."):
            out.append(l)
        else:
            out.append("    " + l)
    return "\n".join(out) + "\n"
```

```python
import sys, os
sys.path.insert(0, os.path.dirname(os.path.abspath(__file__)))
from asmdsl import Asm, v, s, hazard_pass, render

NAME = "parallel_sum__grouped_kv_mqa__dense_activation_mish__prompt"

OPT = dict(stamps=False, prefetch_code=True, force_fallback=False, gprio=0)
for a_ in sys.argv[2:]:
    k_, v_ = a_.split("=")
    OPT[k_] = int(v_)

WS_K = 0x0
WS_V = 0x10000
WS_FLAG = 0x20000
WS_O = 0x40000
WS_ACT = 0x240000
WS_STAMP = 0x800000
WS_SIZE = 0x900000
L_XC = 0
L_MISC = 65536
L_R1 = L_MISC + 1024
L_QS = L_R1 + 32768
L_GR = L_R1 + 46080
L_END = L_GR + 49152
M_RSTD, M_DEN, M_CNT = 0, 256, 512
C_KV, C_Q1, C_Q2, C_KVSEEN, C_MQ, C_MK, C_MKALL, C_G1, C_ACT, C_G2, C_WO, C_O0, C_O1, C_F0, C_F1, C_MX = \
    [M_CNT + 4 * i for i in range(16)]
R1 = L_R1 - L_MISC
OSUM = R1
QF = R1 + 36864
MROW = R1 + 45056

LOG2E = 1.4426950408889634
import struct
def fbits(x):
    return "0x%08x" % struct.unpack("<I", struct.pack("<f", x))[0]

P_X, P_WQ, P_WK, P_WV, P_WO, P_W1, P_B1, P_W2, P_OUT, P_DBG, P_WS = 8, 10, 12, 14, 16, 20, 22, 24, 26, 28, 30
sW, sG, sJ = 3, 4, 5
SRD_A, SRD_B, SRD_C, SRD_D, SRD_WS, SRD_DBG = 32, 36, 40, 44, 48, 52
sT = 56
sSPIN, sSP2 = 76, 77
sONES = 78
sSTAMP = 80
vBIG, vL4, vL16, vZ = 164, 165, 166, 167

a = Asm()
nstamp = {}


def srd(dst, ptr, size):
    a(f"s_mov_b32 {s(dst)}, {s(ptr)}")
    a(f"s_mov_b32 {s(dst + 1)}, {s(ptr + 1)}")
    a(f"s_mov_b32 {s(dst + 2)}, {size}")
    a(f"s_mov_b32 {s(dst + 3)}, 0x20000")


def stamp(i):
    if not OPT["stamps"]:
        return
    a(f"{'s_memtime' if OPT['stamps'] == 2 else 's_memrealtime'} {s(sSTAMP + 2 * i, 2)}")
    a.wait_lg_all()


def stamps_out(n):
    if not OPT["stamps"]:
        return
    a("s_waitcnt vmcnt(0) lgkmcnt(0)")
    a(f"s_mul_i32 s56, s2, 12")
    a(f"s_add_u32 s56, s56, {s(sW)}")
    a(f"s_lshl_b32 s56, s56, 6")
    a(f"s_add_u32 s56, s56, {WS_STAMP}")
    a("s_mov_b64 exec, 1")
    for i in range(n):
        a(f"v_mov_b32 v0, {s(sSTAMP + 2 * i)}")
        a(f"buffer_store_dword v0, off, {s(SRD_WS, 4)}, s56 offset:{4 * i}")
    a("s_waitcnt vmcnt(0)")


def arrive(off):
    a("s_mov_b64 exec, 1")
    a.lds(f"ds_inc_u32 {v(vL4)}, {v(vBIG)} offset:{off}")
    a("s_mov_b64 exec, -1")


def arrive_rtn(off, tmp, sdst):
    a("s_mov_b64 exec, 1")
    a.lds(f"ds_inc_rtn_u32 {v(tmp)}, {v(vL4)}, {v(vBIG)} offset:{off}")
    a("s_mov_b64 exec, -1")
    a.wait_lg_all()
    a(f"v_readfirstlane_b32 {s(sdst)}, {v(tmp)}")


def spin_lds(off, n, tmp):
    lo, done = a.newlabel("spin"), a.newlabel("spun")
    a(f"s_mov_b32 {s(sSPIN)}, 0x40000")
    a.label(lo)
    a(f"ds_read_b32 {v(tmp)}, {v(vL4)} offset:{off}")
    a.wait_lg_all()
    a(f"v_readfirstlane_b32 {s(sSP2)}, {v(tmp)}")
    a(f"s_cmp_ge_u32 {s(sSP2)}, {n}")
    a(f"s_cbranch_scc1 {done}")
    a("s_sleep 1")
    a(f"s_sub_u32 {s(sSPIN)}, {s(sSPIN)}, 1")
    a(f"s_cbranch_scc0 {lo}")
    a.label(done)


def poll_global(srdreg, soff, nlanes, tmp, addr, thresh=None):
    lo, done = a.newlabel("poll"), a.newlabel("polled")
    mask = (1 << nlanes) - 1
    a(f"s_mov_b32 {s(sSPIN)}, 0x8000")
    a(f"s_mov_b32 exec_lo, {hex(mask)}")
    a("s_mov_b32 exec_hi, 0")
    a.label(lo)
    a(f"buffer_load_dword {v(tmp)}, {v(addr)}, {s(srdreg, 4)}, {soff} offen sc1")
    a.wait_vm_all()
    if thresh is None:
        a(f"v_cmp_ne_u32 vcc, 0, {v(tmp)}")
    else:
        a(f"v_cmp_le_u32 vcc, {thresh}, {v(tmp)}")
    a(f"s_cmp_eq_u64 vcc, exec")
    a(f"s_cbranch_scc1 {done}")
    a("s_sleep 2")
    a(f"s_sub_u32 {s(sSPIN)}, {s(sSPIN)}, 1")
    a(f"s_cbranch_scc0 {lo}")
    a.label(done)
    a("s_mov_b64 exec, -1")


def set_flag(k, tmp):
    a(f"s_lshl_b32 s56, {s(sG)}, 8")
    a(f"s_lshl_b32 s57, {s(sJ)}, 2")
    a("s_add_u32 s56, s56, s57")
    a(f"s_add_u32 s56, s56, {WS_FLAG + 32 * k}")
    a("s_mov_b64 exec, 1")
    a(f"v_mov_b32 {v(tmp)}, 1")
    a(f"buffer_store_dword {v(tmp)}, off, {s(SRD_WS, 4)}, s56 sc1")
    a("s_mov_b64 exec, -1")


def mfma32(d, A, B, C=None):
    c = "0" if C is None else v(C, 16)
    a(f"v_mfma_f32_32x32x16_bf16 {v(d, 16)}, {v(A, 4)}, {v(B, 4)}, {c}")


def tr_lane(dst, t1, t2, hstride, lane):
    a(f"v_lshrrev_b32 {v(t1)}, 5, {v(lane)}")
    a(f"v_mul_u32_u24 {v(dst)}, {hstride}, {v(t1)}")
    a(f"v_bfe_u32 {v(t1)}, {v(lane)}, 2, 2")
    a(f"v_lshl_add_u32 {v(dst)}, {v(t1)}, 6, {v(dst)}")
    a(f"v_bfe_u32 {v(t1)}, {v(lane)}, 4, 1")
    a(f"v_lshl_add_u32 {v(dst)}, {v(t1)}, 5, {v(dst)}")
    a(f"v_and_b32 {v(t1)}, 3, {v(lane)}")
    a(f"v_lshl_add_u32 {v(dst)}, {v(t1)}, 3, {v(dst)}")


def xc_addrs(xa, xb, sbase, t1, t2, lane):
    a(f"v_lshrrev_b32 {v(t1)}, 5, {v(lane)}")
    a(f"v_and_b32 {v(t2)}, 31, {v(lane)}")
    a(f"v_xor_b32 {v(t2)}, {v(t1)}, {v(t2)}")
    a(f"v_lshl_add_u32 {v(t1)}, {v(t1)}, 9, {s(sbase)}")
    for var in range(4):
        a(f"v_xor_b32 {v(xa + var)}, {2 * var}, {v(t2)}")
        a(f"v_lshl_add_u32 {v(xa + var)}, {v(xa + var)}, 4, {v(t1)}")
        a(f"v_xor_b32 {v(xb + var)}, 0x8000, {v(xa + var)}")


def finalize(r, u_sgpr):
    a.comment(f"finalize o, row tile {r}")
    T = 96
    spin_lds(C_O0 + 4 * r, 8, T)
    a(f"s_mul_i32 s56, {s(u_sgpr)}, 4608")
    a(f"v_add_u32 {v(T + 12)}, s56, {v(vL4)}")
    for i in (8, 0, 1, 2, 3, 4, 5, 6, 7):
        a.lds(f"ds_read_b64 {v(T + 32 + 2 * i, 2)}, {v(T + 12)} offset:{OSUM + r * 4 * 4608 + 512 * i}", ("fo", i))
    a(f"s_lshl_b32 s56, {s(sG)}, 16")
    a(f"s_lshl_b32 s57, {s(sJ)}, 12")
    a("s_add_u32 s56, s56, s57")
    a(f"s_lshl_b32 s57, {s(u_sgpr)}, 10")
    a("s_add_u32 s56, s56, s57")
    a(f"s_add_u32 s56, s56, {WS_O + r * 32768}")
    a(f"v_subrev_u32 {v(T + 13)}, {L_MISC}, {v(vL16)}")
    a.wait_lg(("fo", 8))
    a(f"v_cvt_f32_f64 {v(T + 8)}, {v(T + 48, 2)}")
    a(f"v_rcp_f32 {v(T + 8)}, {v(T + 8)}")
    a.wait_lg_all()
    for i in range(8):
        a(f"v_cvt_f32_f64 {v(T + i)}, {v(T + 32 + 2 * i, 2)}")
    for i in range(4):
        a(f"v_pk_mul_f32 {v(T + 2 * i, 2)}, {v(T + 2 * i, 2)}, {v(T + 8, 2)} op_sel_hi:[1,0]")
    for i in range(4):
        a(f"v_cvt_pk_bf16_f32 {v(T + 16 + i)}, {v(T + 2 * i)}, {v(T + 2 * i + 1)}")
    a.vmem(f"buffer_store_dwordx4 {v(T + 16, 4)}, {v(T + 13)}, {s(SRD_WS, 4)}, s56 offen sc1")
    a.wait_vm_all()
    arrive_rtn(C_F0 + 4 * r, T, 58)
    skip = a.newlabel("nofl")
    a("s_cmp_eq_u32 s58, 3")
    a(f"s_cbranch_scc0 {skip}")
    set_flag(1 + r, T)
    a.label(skip)


a("s_cmp_ge_u32 s2, 256")
a("s_cbranch_scc1 L_end")
a("s_load_dwordx16 s[8:23], s[0:1], 0")
a("s_load_dwordx8 s[24:31], s[0:1], 64")
if OPT["stamps"]:
    a(f"{'s_memtime' if OPT['stamps'] == 2 else 's_memrealtime'} {s(sSTAMP, 2)}")
a("v_lshrrev_b32 v1, 6, v0")
a(f"v_and_b32 {v(vZ)}, 63, v0")
a(f"v_readfirstlane_b32 {s(sW)}, v1")
a("s_and_b32 s6, s2, 7")
a("s_bfe_u32 s7, s2, 0x20003")
a(f"s_lshl_b32 {s(sG)}, s6, 2")
a(f"s_add_u32 {s(sG)}, {s(sG)}, s7")
a(f"s_lshr_b32 {s(sJ)}, s2, 5")
LANE = vZ
a(f"v_lshlrev_b32 {v(vL4)}, 2, {v(LANE)}")
a(f"v_lshlrev_b32 {v(vL16)}, 4, {v(LANE)}")
a(f"v_add_u32 {v(vL4)}, {L_MISC}, {v(vL4)}")
a(f"v_add_u32 {v(vL16)}, {L_MISC}, {v(vL16)}")
a(f"v_mov_b32 {v(vBIG)}, 0xdddd")
a(f"s_cmp_ge_u32 {s(sW)}, 8")
a("s_cbranch_scc1 L_G")

a(f"v_lshrrev_b32 v160, 3, {v(LANE)}")
a(f"v_and_b32 v161, 7, {v(LANE)}")
a("v_lshlrev_b32 v162, 10, v160")
a("v_lshl_add_u32 v162, v161, 4, v162")
a(f"s_lshl_b32 s56, {s(sG)}, 16")
a(f"s_lshl_b32 s57, {s(sW)}, 13")
a("s_add_u32 s56, s56, s57")
a("s_waitcnt lgkmcnt(0)")
srd(SRD_A, P_X, 2048 * 1024)
for i in range(8):
    a(f"buffer_load_dwordx4 {v(4 * i, 4)}, v162, {s(SRD_A, 4)}, s56 offen offset:{128 * i}")
srd(SRD_WS, P_WS, WS_SIZE)
srd(SRD_DBG, P_DBG, 256)
a(f"s_cmp_ge_u32 {s(sW)}, 4")
a("s_cbranch_scc1 L_A_hi")
srd(SRD_B, P_WQ, 512 * 1024)
a(f"v_lshrrev_b32 v96, 2, {v(LANE)}")
a(f"v_and_b32 v97, 3, {v(LANE)}")
a("v_lshlrev_b32 v96, 10, v96")
a("v_lshl_add_u32 v96, v97, 4, v96")
a(f"s_lshr_b32 s57, {s(sW)}, 1")
a("s_lshl_b32 s57, s57, 18")
a(f"s_and_b32 s58, {s(sW)}, 1")
a("s_lshl_b32 s58, s58, 6")
a("s_add_u32 s57, s57, s58")
a(f"s_lshl_b32 s58, {s(sJ)}, 7")
a("s_add_u32 s57, s57, s58")
for t in range(16):
    a(f"buffer_load_dwordx4 {v(32 + 4 * t, 4)}, v96, {s(SRD_B, 4)}, s57 offen")
    if t < 15:
        a("s_add_u32 s57, s57, 0x4000")
a("s_mov_b32 s59, 1")
a("s_branch L_A_pre")
a.label("L_A_hi")
a("s_mov_b32 s59, 0")
a(f"s_cmp_eq_u32 {s(sW)}, 4")
a("s_cbranch_scc0 L_A_n4")
a("v_mov_b32 v96, 0")
a(f"ds_write_b32 {v(vL4)}, v96 offset:{M_CNT}")
a.label("L_A_n4")
a(f"s_cmp_eq_u32 {s(sW)}, 5")
a("s_cbranch_scc0 L_A_n5")
a(f"s_lshl_b32 s57, {s(sG)}, 8")
a(f"s_lshl_b32 s58, {s(sJ)}, 2")
a("s_add_u32 s57, s57, s58")
a(f"s_add_u32 s57, s57, {WS_FLAG}")
a(f"v_lshlrev_b32 v96, 5, {v(LANE)}")
a("v_mov_b32 v97, 0")
a("s_mov_b64 exec, 7")
a(f"buffer_store_dword v97, v96, {s(SRD_WS, 4)}, s57 offen sc1")
a("s_mov_b64 exec, 1")
a("v_mov_b32 v97, 1")
a(f"s_lshl_b32 s57, {s(sG)}, 2")
a("s_add_u32 s57, s57, 128")
a("s_waitcnt vmcnt(0)")
a(f"buffer_atomic_add v97, off, {s(SRD_DBG, 4)}, s57 sc1")
a("s_mov_b64 exec, -1")
a("s_mov_b32 s59, 2")
a.label("L_A_n5")
NPF = 5
if OPT["prefetch_code"]:
    a(f"s_cmp_eq_u32 {s(sW)}, 7")
    a("s_cbranch_scc0 L_A_pre")
    a("s_getpc_b64 s[60:61]")
    a.label("L_pcref")
    a(f"v_lshlrev_b32 v96, 7, {v(LANE)}")
    for i in range(NPF):
        a("v_min_u32 v97, L_end-L_pcref, v96")
        a(f"global_load_dword v{32 + i}, v97, s[60:61]")
        if i < NPF - 1:
            a("v_add_u32 v96, 0x2000, v96")
    a("s_mov_b32 s59, 2")
a.label("L_A_pre")
a(f"s_and_b32 s57, {s(sW)}, 3")
a("s_lshl_b32 s57, s57, 3")
a("v_add_u32 v163, s57, v160")
a("v_xor_b32 v163, v163, v161")
a("v_lshlrev_b32 v163, 4, v163")
a("v_lshrrev_b32 v96, 1, v161")
a("v_lshl_add_u32 v163, v96, 10, v163")
a("v_and_b32 v96, 1, v161")
a("v_lshl_add_u32 v163, v96, 9, v163")
a(f"s_lshr_b32 s57, {s(sW)}, 2")
a("s_lshl_b32 s57, s57, 15")
a("v_add_u32 v163, s57, v163")
a(f"s_lshl_b32 s57, {s(sW)}, 5")
a(f"s_add_u32 s57, s57, {L_MISC}")
a("v_lshl_add_u32 v162, v160, 2, s57")
a("s_mov_b32 s60, 0x3f803f80")
a("s_mov_b32 s61, 0x00003f80")
a("s_mov_b32 s62, 0x3f800000")
for i in range(4):
    a(f"v_mov_b32 v{96 + i}, 0")
a("v_mov_b32 v108, 0")
a("v_mov_b32 v109, 0")
a("s_cmp_eq_u32 s59, 1")
a("s_cbranch_scc1 L_A_w16")
a("s_cmp_eq_u32 s59, 2")
a("s_cbranch_scc1 L_A_wpf")
a("s_waitcnt vmcnt(0)")
a.label("L_A_wpf")
a(f"s_waitcnt vmcnt({NPF})")
a.label("L_A_w16")
a("s_waitcnt vmcnt(16)")
stamp(1)
for i in range(32):
    a(f"v_dot2c_f32_bf16 v{96 + i % 4}, s60, v{i}")
a("v_add_f32 v96, v96, v97")
a("v_add_f32 v98, v98, v99")
a("v_add_f32 v96, v96, v98")


def red8(r):
    a(f"v_add_f32_dpp {v(r)}, {v(r)}, {v(r)} quad_perm:[1,0,3,2] row_mask:0xf bank_mask:0xf")
    a(f"v_add_f32_dpp {v(r)}, {v(r)}, {v(r)} quad_perm:[2,3,0,1] row_mask:0xf bank_mask:0xf")
    a(f"v_add_f32_dpp {v(r)}, {v(r)}, {v(r)} row_half_mirror row_mask:0xf bank_mask:0xf")


red8(96)
a(f"v_mul_f32 v97, {fbits(-1.0 / 512)}, v96")
a("v_cvt_pk_bf16_f32 v98, v97, v97")
a("v_lshlrev_b32 v98, 16, v98")
a("v_sub_f32 v99, v97, v98")
for i in range(32 + 3):
    if i < 32:
        t = 100 + 2 * (i % 4)
        a(f"v_dot2_f32_bf16 v{t}, v{i}, s61, v98")
        a(f"v_dot2_f32_bf16 v{t + 1}, v{i}, s62, v98")
    k = i - 2
    if 0 <= k < 32:
        t = 100 + 2 * (k % 4)
        a(f"v_cvt_pk_bf16_f32 v{k}, v{t}, v{t + 1}")
    k = i - 3
    if 0 <= k < 32:
        a(f"v_dot2c_f32_bf16 v{108 + k % 2}, v{k}, v{k}")
        if k % 4 == 3:
            a.lds(f"ds_write_b128 v163, {v(k - 3, 4)} offset:{4096 * (k // 4)}")
a("v_add_f32 v108, v108, v109")
red8(108)
a(f"v_mul_f32 v108, {fbits(1.0 / 512)}, v108")
a("v_fma_f32 v108, -v99, v99, v108")
a("v_max_f32 v108, 0, v108")
a("v_cvt_pk_bf16_f32 v108, v108, v108")
a("v_lshlrev_b32 v108, 16, v108")
a(f"v_add_f32 v108, {fbits(1e-5)}, v108")
a("v_cvt_pk_bf16_f32 v108, v108, v108")
a("v_lshlrev_b32 v108, 16, v108")
a("v_sqrt_f32 v108, v108")
a("v_cvt_pk_bf16_f32 v109, v108, 0")
a("v_lshlrev_b32 v108, 16, v109")
a("v_rcp_f32 v108, v108")
a.lds(f"ds_write_b32 v162, v109 offset:{M_DEN}")
a.lds(f"ds_write_b32 v162, v108 offset:{M_RSTD}")
a.wait_lg_all()
a("s_barrier")
stamp(2)

a(f"s_cmp_eq_u32 {s(sJ)}, 0")
a("s_cbranch_scc0 L_A_nokv")
a(f"s_lshr_b32 s57, {s(sW)}, 1")
a(f"s_and_b32 s58, {s(sW)}, 1")
a(f"v_lshrrev_b32 v12, 4, {v(LANE)}")
a(f"v_and_b32 v13, 15, {v(LANE)}")
a("s_and_b32 s59, s57, 1")
a("s_lshl_b32 s59, s59, 4")
a("v_add_u32 v14, s59, v13")
a("v_xor_b32 v14, v14, v12")
a("v_lshrrev_b32 v15, 1, v12")
a("v_lshlrev_b32 v15, 10, v15")
a("v_and_b32 v16, 1, v12")
a("v_lshl_add_u32 v15, v16, 9, v15")
a("s_lshr_b32 s59, s57, 1")
a("s_lshl_b32 s59, s59, 15")
a("v_add_u32 v15, s59, v15")
a("v_lshl_add_u32 v8, v14, 4, v15")
a("v_xor_b32 v14, 4, v14")
a("v_lshl_add_u32 v9, v14, 4, v15")
a("s_lshl_b32 s59, s58, 14")
a(f"s_add_u32 s59, s59, {L_R1}")
a(f"v_lshl_add_u32 v10, {v(LANE)}, 3, s59")


def kv_reads(st):
    f = 96 + 8 * (st % 6)
    a.lds(f"ds_read_b128 {v(f, 4)}, v{8 + st % 2} offset:{2048 * st}", ("kv", st))
    a.lds(f"ds_read_b64_tr_b16 {v(f + 4, 2)}, v10 offset:{1024 * st}", ("kv", st))
    a.lds(f"ds_read_b64_tr_b16 {v(f + 6, 2)}, v10 offset:{1024 * st + 512}", ("kv", st))


def kv_body(isv):
    a.lg_reset()
    for st in range(5):
        kv_reads(st)
    for st in range(16):
        a.wait_lg(("kv", st))
        f = 96 + 8 * (st % 6)
        A_, B_ = (f, f + 4) if isv else (f + 4, f)
        acc = 4 * (st % 2)
        c = "0" if st < 2 else v(acc, 4)
        a(f"v_mfma_f32_16x16x32_bf16 {v(acc, 4)}, {v(A_, 4)}, {v(B_, 4)}, {c}")
        if st + 5 < 16:
            kv_reads(st + 5)


a("s_cmp_eq_u32 s58, 0")
a("s_cbranch_scc0 L_kv_v")
kv_body(False)
a("s_lshl_b32 s59, s57, 6")
a(f"s_add_u32 s59, s59, {L_MISC + M_RSTD}")
a("v_lshl_add_u32 v16, v13, 2, s59")
a.lds("ds_read_b32 v20, v16")
a("v_and_b32 v16, 1, v12")
a("v_lshlrev_b32 v16, 9, v16")
a("v_lshl_add_u32 v16, v13, 4, v16")
a("v_lshrrev_b32 v17, 1, v12")
a("v_lshl_add_u32 v16, v17, 3, v16")
a(f"s_lshl_b32 s60, {s(sG)}, 11")
a("s_lshr_b32 s59, s57, 1")
a("s_lshl_b32 s59, s59, 10")
a("s_add_u32 s60, s60, s59")
a("s_and_b32 s59, s57, 1")
a("s_lshl_b32 s59, s59, 8")
a("s_add_u32 s60, s60, s59")
if WS_K:
    a(f"s_add_u32 s60, s60, {WS_K}")
a("v_pk_add_f32 v[0:1], v[0:1], v[4:5]")
a("v_pk_add_f32 v[2:3], v[2:3], v[6:7]")
a.wait_lg_all()
a("v_pk_mul_f32 v[0:1], v[0:1], v[20:21] op_sel_hi:[1,0]")
a("v_pk_mul_f32 v[2:3], v[2:3], v[20:21] op_sel_hi:[1,0]")
a("v_cvt_pk_bf16_f32 v4, v0, v1")
a("v_cvt_pk_bf16_f32 v5, v2, v3")
a(f"buffer_store_dwordx2 v[4:5], v16, {s(SRD_WS, 4)}, s60 offen sc1")
a("v_dot2_f32_bf16 v6, v4, v4, 0")
a("v_dot2_f32_bf16 v6, v5, v5, v6")
a("v_mov_b32 v7, v6")
a("v_permlane32_swap_b32 v6, v7")
a("v_add_f32 v6, v6, v7")
a("s_branch L_kv_pub")
a.label("L_kv_v")
kv_body(True)
a("s_lshl_b32 s59, s57, 6")
a(f"s_add_u32 s59, s59, {L_MISC + M_RSTD}")
a("v_lshl_add_u32 v16, v12, 4, s59")
a.lds("ds_read_b128 v[20:23], v16")
a("v_lshrrev_b32 v16, 1, v12")
a("v_lshlrev_b32 v16, 8, v16")
a("v_lshl_add_u32 v16, v13, 4, v16")
a("v_and_b32 v17, 1, v12")
a("v_lshl_add_u32 v16, v17, 3, v16")
a(f"s_lshl_b32 s60, {s(sG)}, 11")
a("s_lshl_b32 s59, s57, 9")
a("s_add_u32 s60, s60, s59")
a(f"s_add_u32 s60, s60, {WS_V}")
a("v_pk_add_f32 v[0:1], v[0:1], v[4:5]")
a("v_pk_add_f32 v[2:3], v[2:3], v[6:7]")
a.wait_lg_all()
a("v_pk_mul_f32 v[0:1], v[0:1], v[20:21]")
a("v_pk_mul_f32 v[2:3], v[2:3], v[22:23]")
a("v_cvt_pk_bf16_f32 v4, v0, v1")
a("v_cvt_pk_bf16_f32 v5, v2, v3")
a(f"buffer_store_dwordx2 v[4:5], v16, {s(SRD_WS, 4)}, s60 offen sc1")
a("v_dot2_f32_bf16 v6, v4, v4, 0")
a("v_dot2_f32_bf16 v6, v5, v5, v6")
a(f"v_mov_b32 v7, 0x7f800000")
a(f"v_cmp_ge_f32 vcc, {fbits(2.0 ** 100)}, v6")
a("v_cndmask_b32_e64 v6, v7, 0, vcc")
a.label("L_kv_pub")
a(f"v_mov_b32 v7, {L_MISC}")
a(f"ds_max_u32 v7, v6 offset:{C_MK}")
a("s_waitcnt vmcnt(0) lgkmcnt(0)")
a.lg_reset()
arrive_rtn(C_KV, 6, 59)
a("s_cmp_eq_u32 s59, 7")
a("s_cbranch_scc0 L_A_nokv")
a(f"ds_read_b32 v6, v7 offset:{C_MK}")
a(f"s_lshl_b32 s59, {s(sG)}, 2")
a("s_mov_b64 exec, 1")
a.wait_lg_all()
a("v_or_b32 v6, 1, v6")
a(f"buffer_store_dword v6, off, {s(SRD_DBG, 4)}, s59 sc1")
a("s_mov_b64 exec, -1")
a.label("L_A_nokv")
stamp(3)

a(f"s_cmp_ge_u32 {s(sW)}, 4")
a("s_cbranch_scc1 L_A_noq")
a(f"s_lshr_b32 s57, {s(sW)}, 1")
a(f"s_and_b32 s58, {s(sW)}, 1")
a("s_mul_i32 s59, s57, 0xc000")
xc_addrs(0, 4, 59, 10, 11, LANE)
tr_lane(8, 10, 11, 512, LANE)
a(f"s_lshl_b32 s59, {s(sW)}, 11")
a(f"s_add_u32 s59, s59, {L_QS}")
a("v_add_u32 v8, s59, v8")
a(f"v_lshl_add_u32 v9, {v(LANE)}, 4, s59")
a("s_waitcnt vmcnt(0)")
a.lg_reset()


def q_reads(t):
    st = t % 2
    a.lds(f"ds_write_b128 v9, {v(32 + 4 * t, 4)} offset:{1024 * st}")
    a.lds(f"ds_read_b128 {v(104 + 8 * st, 4)}, v{t % 4} offset:{1024 * t}", ("q", t))
    a.lds(f"ds_read_b128 {v(108 + 8 * st, 4)}, v{4 + t % 4} offset:{1024 * t}", ("q", t))
    a.lds(f"ds_read_b64_tr_b16 {v(96 + 4 * st, 2)}, v8 offset:{1024 * st}", ("q", t))
    a.lds(f"ds_read_b64_tr_b16 {v(98 + 4 * st, 2)}, v8 offset:{1024 * st + 256}", ("q", t))


q_reads(0)
for t in range(16):
    if t + 1 < 16:
        q_reads(t + 1)
    a.wait_lg(("q", t))
    st = t % 2
    mfma32(128, 96 + 4 * st, 104 + 8 * st, None if t == 0 else 128)
    mfma32(144, 96 + 4 * st, 108 + 8 * st, None if t == 0 else 144)
a(f"s_cmp_eq_u32 {s(sJ)}, 0")
a("s_cbranch_scc0 L_q_nokvwait")
spin_lds(C_KV, 8, 10)
a.label("L_q_nokvwait")
a(f"s_lshl_b32 s59, {s(sW)}, 12")
a(f"v_add_u32 v10, s59, {v(vL16)}")
a("v_xor_b32 v11, 0x2000, v10")
for q in range(4):
    a.lds(f"ds_write_b128 v10, {v(144 + 4 * q, 4)} offset:{R1 + 1024 * q}")
a("s_lshl_b32 s59, s57, 7")
a(f"v_and_b32 v12, 31, {v(LANE)}")
a("v_lshl_add_u32 v12, v12, 2, s59")
a(f"v_add_u32 v12, {L_MISC}, v12")
a.lds(f"ds_read_b32 v14, v12 offset:{M_RSTD}")
a.wait_lg_all()
arrive(C_Q1)
spin_lds(C_Q1, 4, 13)
for q in range(4):
    a.lds(f"ds_read_b128 {v(144 + 4 * q, 4)}, v11 offset:{R1 + 1024 * q}", "px")
a(f"v_mul_f32 v14, {fbits(0.25 * LOG2E)}, v14")
for i in range(4):
    a(f"v_mov_b32 v{16 + i}, 0")
a("v_mov_b32 v20, 0xff800000")
a.wait_lg("px")
for q in range(4):
    a.lds(f"ds_write_b128 v11, v[16:19] offset:{R1 + 1024 * q}")
a(f"s_mul_i32 s59, {s(sW)}, 5120")
a(f"v_add_u32 v13, s59, {v(vL16)}")
for q in range(5):
    a.lds(f"ds_write_b128 v13, v[16:19] offset:{R1 + 16384 + 1024 * q}")
a(f"s_lshl_b32 s59, {s(sW)}, 8")
a(f"v_add_u32 v13, s59, {v(vL4)}")
a.lds(f"ds_write_b32 v13, v20 offset:{MROW}")
for i in range(8):
    a(f"v_pk_add_f32 {v(128 + 2 * i, 2)}, {v(128 + 2 * i, 2)}, {v(144 + 2 * i, 2)}")
for i in range(8):
    a(f"v_pk_mul_f32 {v(128 + 2 * i, 2)}, {v(128 + 2 * i, 2)}, v[14:15] op_sel_hi:[1,0]")
for i in range(8):
    a(f"v_cvt_pk_bf16_f32 {v(144 + i)}, {v(128 + 2 * i)}, {v(129 + 2 * i)}")
a("s_lshl_b32 s59, s57, 12")
a("s_lshl_b32 s60, s58, 11")
a("s_add_u32 s59, s59, s60")
a(f"v_add_u32 v13, s59, {v(vL16)}")
a.lds(f"ds_write_b128 v13, v[144:147] offset:{QF}")
a.lds(f"ds_write_b128 v13, v[148:151] offset:{QF + 1024}")
for i in range(4):
    a(f"v_dot2c_f32_bf16 v16, v{144 + i}, v{144 + i}")
    a(f"v_dot2c_f32_bf16 v17, v{148 + i}, v{148 + i}")
a(f"v_mov_b32 v18, {L_MISC}")
a("v_max_u32 v16, v16, v17")
a.lds(f"ds_max_u32 v18, v16 offset:{C_MQ}")
a.wait_lg_all()
arrive(C_Q2)
a.label("L_A_noq")
stamp(4)

vK, vV, vS, vO, vQ = 0, 32, 96, 128, 160
a(f"s_mov_b32 {s(sONES)}, 0x3f803f80")
a(f"s_mov_b32 {s(sONES + 1)}, 0x3f803f80")
a("s_waitcnt vmcnt(0)")
for i in range(32):
    a(f"v_pk_mov_b32 {v(vV + 2 * i, 2)}, {s(sONES, 2)}, {s(sONES, 2)}")
for i in range(9):
    a(f"v_mov_b32 {v(vO + i)}, 0")
    a(f"v_mov_b32 {v(vO + 16 + i)}, 0")
a(f"s_mov_b32 s57, {L_MISC}")
a(f"v_lshl_add_u32 {v(vL4)}, {v(LANE)}, 3, s57")
a(f"v_lshlrev_b32 v96, 4, {v(LANE)}")
a(f"v_lshrrev_b32 v97, 5, {v(LANE)}")
a(f"v_and_b32 v98, 15, {v(LANE)}")
a("v_lshlrev_b32 v97, 8, v97")
a("v_lshl_add_u32 v97, v98, 4, v97")
a(f"s_cmp_eq_u32 {s(sW)}, 7")
a("s_cbranch_scc0 L_A_nopoll")
a(f"v_lshlrev_b32 v98, 2, {v(LANE)}")
poll_global(SRD_DBG, 0, 32, 99, 98)
a(f"v_mov_b32 v98, {L_MISC}")
a("s_mov_b32 exec_hi, 0")
a(f"ds_max_u32 v98, v99 offset:{C_MKALL}")
a("s_mov_b64 exec, -1")
a.wait_lg_all()
arrive(C_KVSEEN)
a.label("L_A_nopoll")
spin_lds(C_KVSEEN, 1, 99)
stamp(5)
a(f"s_lshl_b32 s57, {s(sW)}, 13")
if WS_K:
    a(f"s_add_u32 s57, s57, {WS_K}")
a(f"s_add_u32 s58, s57, {WS_V - WS_K}")
a("s_add_u32 s59, s57, 0x1000")
a("s_add_u32 s60, s58, 0x1000")
a("s_mov_b32 s62, 0x0000ffff")
a("s_mov_b32 s63, 0x0000ffff")
a.vm_reset()
for T in range(8):
    a.vmem(f"buffer_load_dwordx4 {v(vK + 4 * T, 4)}, v96, {s(SRD_WS, 4)}, s{57 if T < 4 else 59} offen offset:{1024 * (T % 4)} sc1", ("K", T))
    a("s_mov_b64 exec, s[62:63]")
    for u in range(2):
        b = 2 * T + u
        a.vmem(f"buffer_load_dwordx4 {v(vV + 4 * b, 4)}, v97, {s(SRD_WS, 4)}, s{58 if b < 8 else 60} offen offset:{512 * (b % 8)} sc1", ("V", b))
    a("s_mov_b64 exec, -1")
spin_lds(C_Q2, 4, 99)
a.lds(f"ds_read_b32 v98, {v(vL4)} offset:{C_MQ}")
a.lds(f"ds_read_b32 v99, {v(vL4)} offset:{C_MKALL}")
a.lds(f"ds_read_b128 {v(vQ, 4)}, {v(vL16)} offset:{QF}")
a.wait_lg_all()
a("v_readfirstlane_b32 s57, v98")
a("v_readfirstlane_b32 s58, v99")
a("v_mov_b32 v98, s57")
a("v_mul_f32 v98, s58, v98")
a(f"v_cmp_ge_f32 vcc, {fbits(1024.0 if not OPT['force_fallback'] else -1.0)}, v98")
a("s_cbranch_vccz L_fallback")
a(f"v_mov_b32 {v(vZ)}, 0")

vm_saved = list(a.vm)


def qk(dst, T):
    a.wait_vm(("K", T))
    mfma32(dst, vK + 4 * T, vQ, None)


def pv(o, b, src):
    a.wait_vm(("V", b))
    a(f"v_smfmac_f32_32x32x32_bf16 {v(o, 16)}, {v(vV + 4 * b, 4)}, {v(src, 8)}, {v(vBIG)}")


def osum_add(qt, i):
    o = vO + 16 * (qt % 2)
    t = o + 10 + 2 * (i % 3)
    a(f"v_cvt_f64_f32 {v(t, 2)}, {v(o + i)}")
    a.lds(f"ds_add_f64 {v(vL4)}, {v(t, 2)} offset:{OSUM + qt * 4608 + 512 * i}", ("os", qt))


qk(vS, 0)
stamp(6)
for qt in range(8):
    o = vO + 16 * (qt % 2)
    for T in range(8):
        n = qt * 8 + T
        S = vS + 16 * (n % 2)
        Sn = vS + 16 * (1 - n % 2)
        e = lambda i: a(f"v_exp_f32 {v(S + i)}, {v(S + i)}")
        e(0); e(1)
        if n > 0:
            if T == 0:
                pv(vO + 16 * ((qt - 1) % 2), 15, Sn + 8)
            else:
                pv(o, 2 * T - 1, Sn + 8)
        e(2); e(3); e(4)
        if n < 63:
            if T == 7:
                a.wait_lg(("Q", qt + 1))
            qk(Sn, (T + 1) % 8)
        if T == 6 and qt < 7:
            a.lds(f"ds_read_b128 {v(vQ, 4)}, {v(vL16)} offset:{QF + 1024 * (qt + 1)}", ("Q", qt + 1))
        e(5); e(6); e(7); e(8); e(9)
        pv(o, 2 * T, S)
        extra = []
        if T == 0 and qt > 0:
            extra = [None, None, None, (0, 1, 2), (3, 4), ()]
        elif T == 1 and qt > 0:
            extra = [(5, 6), (7, 8), None, None, None, None]
        for i in range(10, 16):
            e(i)
            if extra and extra[i - 10]:
                for k in extra[i - 10]:
                    osum_add(qt - 1, k)
        if T == 3 and 0 < qt < 7:
            op = vO + 16 * ((qt - 1) % 2)
            a(f"v_mfma_f32_32x32x2_f32 {v(op, 16)}, {v(vZ)}, {v(vZ)}, 0")
        if T == 3 and qt == 4:
            a.wait_lg(("os", 3))
            arrive(C_O0)
pv(vO + 16, 15, vS + 16 + 8)
for i in range(9):
    osum_add(7, i)
a.wait_lg_all()
arrive(C_O1)
a.label("L_A_attn_done")
stamp(7)
a(f"s_cmp_ge_u32 {s(sW)}, 4")
a("s_cbranch_scc1 L_A_end")
finalize(0, sW)
stamp(8)
finalize(1, sW)
stamp(9)
a.label("L_A_end")
stamps_out(10)
a("s_endpgm")

a.label("L_fallback")
a("s_waitcnt vmcnt(0)")
a.vm_reset()
a.lg_reset()
a(f"v_and_b32 v144, 31, {v(LANE)}")
a("v_lshlrev_b32 v144, 2, v144")
a(f"v_add_u32 v144, {L_MISC}, v144")
a(f"v_mov_b32 v145, {v(vL16)}")
a("s_mov_b32 s57, 0")
a.label("L_fb1")
a(f"ds_read_b128 {v(vQ, 4)}, v145 offset:{QF}")
a("v_mov_b32 v146, 0xff800000")
a("s_waitcnt lgkmcnt(0)")
for T in range(8):
    mfma32(vS, vK + 4 * T, vQ, None)
    for i in range(8):
        a(f"v_max3_f32 v146, v146, {v(vS + 2 * i)}, {v(vS + 2 * i + 1)}")
a(f"ds_max_f32 v144, v146 offset:{MROW}")
a("v_add_u32 v144, 128, v144")
a("v_add_u32 v145, 1024, v145")
a("s_add_u32 s57, s57, 1")
a("s_cmp_lt_u32 s57, 8")
a("s_cbranch_scc1 L_fb1")
a.wait_lg_all()
arrive(C_MX)
spin_lds(C_MX, 8, 146)
a("v_subrev_u32 v144, 1024, v144")
a(f"v_mov_b32 v145, {v(vL16)}")
a(f"v_mov_b32 v147, {v(vL4)}")
a("s_mov_b32 s57, 0")
a.label("L_fb2")
a(f"ds_read_b128 {v(vQ, 4)}, v145 offset:{QF}")
a(f"ds_read_b32 v146, v144 offset:{MROW}")
for i in range(16):
    a(f"v_mov_b32 {v(vO + i)}, 0")
a("s_waitcnt lgkmcnt(0)")
for T in range(8):
    mfma32(vS, vK + 4 * T, vQ, None)
    for i in range(16):
        a(f"v_sub_f32 {v(vS + i)}, {v(vS + i)}, v146")
    for i in range(16):
        a(f"v_exp_f32 {v(vS + i)}, {v(vS + i)}")
    for u in range(2):
        a(f"v_smfmac_f32_32x32x32_bf16 {v(vO, 16)}, {v(vV + 4 * (2 * T + u), 4)}, {v(vS + 8 * u, 8)}, {v(vBIG)}")
for i in range(9):
    a(f"v_cvt_f64_f32 {v(148 + 2 * (i % 4), 2)}, {v(vO + i)}")
    a(f"ds_add_f64 v147, {v(148 + 2 * (i % 4), 2)} offset:{OSUM + 512 * i}")
a("v_add_u32 v144, 128, v144")
a("v_add_u32 v145, 1024, v145")
a("v_add_u32 v147, 4608, v147")
a("s_waitcnt lgkmcnt(0)")
a("s_add_u32 s57, s57, 1")
a("s_cmp_eq_u32 s57, 4")
a("s_cbranch_scc0 L_fb2n")
arrive(C_O0)
a.label("L_fb2n")
a("s_cmp_lt_u32 s57, 8")
a("s_cbranch_scc1 L_fb2")
arrive(C_O1)
a.lg_reset()
a("s_branch L_A_attn_done")

a.label("L_G")
sU, sP, sKH, sNT = 64, 65, 66, 67
a(f"s_sub_u32 {s(sU)}, {s(sW)}, 8")
a(f"s_lshr_b32 {s(sP)}, {s(sU)}, 1")
a(f"s_and_b32 {s(sKH)}, {s(sU)}, 1")
a(f"s_max_u32 s56, {s(sJ)}, 1")
a("s_sub_u32 s56, s56, 1")
a("s_min_u32 s56, s56, 3")
a(f"s_mul_i32 {s(sNT)}, {s(sJ)}, 5")
a(f"s_add_u32 {s(sNT)}, {s(sNT)}, s56")
a(f"s_mul_i32 s56, {s(sP)}, 3")
a(f"s_add_u32 {s(sNT)}, {s(sNT)}, s56")
sN3 = 68
a(f"s_sub_u32 s56, {s(sJ)}, 1")
a("s_cmp_lt_u32 s56, 3")
a(f"s_cselect_b32 {s(sN3)}, 1, 0")
a(f"s_cmp_eq_u32 {s(sP)}, 0")
a(f"s_cselect_b32 {s(sN3)}, 1, {s(sN3)}")
vXA, vXB, vTR, vDMA = 136, 140, 144, 145
a(f"v_lshrrev_b32 v150, 2, {v(LANE)}")
a(f"v_mul_u32_u24 {v(vDMA)}, 2752, v150")
a(f"v_and_b32 v150, 3, {v(LANE)}")
a(f"v_lshl_add_u32 {v(vDMA)}, v150, 4, {v(vDMA)}")
sRING, sW1 = 69, 70
a(f"s_mul_i32 {s(sRING)}, {s(sU)}, 12288")
a(f"s_add_u32 {s(sRING)}, {s(sRING)}, {L_GR}")
a(f"s_mul_i32 {s(sW1)}, {s(sKH)}, {256 * 2752}")
a(f"s_lshl_b32 s56, {s(sNT)}, 6")
a(f"s_add_u32 {s(sW1)}, {s(sW1)}, s56")
a("s_waitcnt lgkmcnt(0)")
srd(SRD_A, P_W1, 512 * 2752)
srd(SRD_B, P_B1, 2752)
srd(SRD_WS, P_WS, WS_SIZE)
srd(SRD_DBG, P_DBG, 256)
if OPT["gprio"]:
    a(f"s_setprio {OPT['gprio']}")
a(f"s_cmp_eq_u32 {s(sJ)}, 0")
a("s_cbranch_scc0 L_G_nokv")
a(f"s_cmp_eq_u32 {s(sKH)}, 0")
a(f"s_cselect_b32 {s(SRD_C)}, {s(P_WK)}, {s(P_WV)}")
a(f"s_cselect_b32 {s(SRD_C + 1)}, {s(P_WK + 1)}, {s(P_WV + 1)}")
a(f"s_mov_b32 {s(SRD_C + 2)}, 16384")
a(f"s_mov_b32 {s(SRD_C + 3)}, 0x20000")
a(f"v_bfe_u32 v150, {v(LANE)}, 3, 2")
a(f"v_lshrrev_b32 v151, 5, {v(LANE)}")
a("v_lshl_add_u32 v150, v150, 1, v151")
a(f"v_and_b32 v151, 7, {v(LANE)}")
a("v_lshlrev_b32 v151, 4, v151")
a("v_lshl_add_u32 v150, v150, 7, v151")
a(f"s_lshl_b32 s56, {s(sP)}, 13")
a(f"s_lshl_b32 s57, {s(sKH)}, 14")
a("s_add_u32 s57, s57, s56")
a(f"s_add_u32 m0, s57, {L_R1}")
for hh in range(2):
    for i in range(4):
        a(f"buffer_load_dwordx4 v150, {s(SRD_C, 4)}, s56 offen offset:{1024 * i} lds")
    if hh == 0:
        a("s_add_u32 s56, s56, 0x1000")
        a("s_add_u32 m0, m0, 0x1000")
a.label("L_G_nokv")
AF = lambda st, t: 96 + 12 * st + 4 * t
BF = lambda st, sl: 120 + 8 * st + 4 * sl
a(f"v_lshlrev_b32 v150, 1, {v(LANE)}")
a(f"v_cmp_gt_u32 vcc, 32, {v(LANE)}")
a("v_mov_b32 v151, 0x10000")
a("v_cndmask_b32 v150, v151, v150, vcc")
a(f"s_lshl_b32 s56, {s(sNT)}, 6")
for t in range(3):
    a(f"buffer_load_ushort {v(AF(1, t))}, v150, {s(SRD_B, 4)}, s56 offen offset:{64 * t}")


def w1_dma(t, nt):
    for k in range(nt):
        a(f"s_add_u32 m0, {s(sRING)}, {(t % 4) * 3072 + k * 1024 - 64 * k}")
        a.vmem(f"buffer_load_dwordx4 {v(vDMA)}, {s(SRD_A, 4)}, {s(sW1)} offen offset:{64 * k} lds", ("w1", t))
    a(f"s_add_u32 {s(sW1)}, {s(sW1)}, {16 * 2752}")


def ffn1(nt):
    a.vm_reset()
    a.lg_reset()
    for t in range(4):
        w1_dma(t, nt)
    a(f"s_mul_i32 s56, {s(sKH)}, 0xc000")
    xc_addrs(vXA, vXB, 56, 150, 151, LANE)
    tr_lane(vTR, 150, 151, 512, LANE)
    a(f"v_add_u32 {v(vTR)}, {s(sRING)}, {v(vTR)}")
    for t in range(3):
        for i in range(1, 4):
            a(f"v_mov_b32 {v(AF(1, t) + i)}, 0")
    for i in range(1, 4):
        a(f"v_mov_b32 {v(BF(1, 0) + i)}, 0")
    a(f"s_lshl_b32 s56, {s(sKH)}, 7")
    a(f"v_and_b32 v150, 31, {v(LANE)}")
    a("v_lshl_add_u32 v150, v150, 2, s56")
    a(f"v_add_u32 v150, {L_MISC}, v150")
    a(f"s_waitcnt vmcnt({4 * nt})")
    a("s_barrier")
    stamp(1)
    a.lds(f"ds_read_b32 {v(BF(1, 0))}, v150 offset:{M_DEN}", "den")
    a.lds(f"ds_read_b32 v152, v150 offset:{M_RSTD}", "den")

    def reads(t):
        st = t % 2
        out = []
        for k in range(nt):
            for f in range(2):
                out.append((f"ds_read_b64_tr_b16 {v(AF(st, k) + 2 * f, 2)}, {v(vTR)} offset:{(t % 4) * 3072 + k * 1024 + 256 * f}", ("f", t)))
        out.insert(2, (f"ds_read_b128 {v(BF(st, 0), 4)}, {v(vXA + t % 4)} offset:{1024 * t}", ("f", t)))
        out.insert(3, (f"ds_read_b128 {v(BF(st, 1), 4)}, {v(vXB + t % 4)} offset:{1024 * t}", ("f", t)))
        return out

    a.wait_vm(("w1", 0))
    for x in reads(0):
        a.lds(*x)
    a.wait_lg("den")
    for k in range(nt):
        mfma32(32 * k, AF(1, k), BF(1, 0), None)
    for t in range(16):
        a.wait_lg(("f", t))
        if t + 4 < 16:
            w1_dma(t + 4, nt)
        rd = []
        if t + 1 < 16:
            a.wait_vm(("w1", t + 1))
            rd = reads(t + 1)
        st = t % 2
        per = (len(rd) + 2 * nt - 1) // (2 * nt)
        for k in range(nt):
            for sl in range(2):
                for x in rd[:per]:
                    a.lds(*x)
                rd = rd[per:]
                mfma32(32 * k + 16 * sl, AF(st, k), BF(st, sl), None if (t == 0 and sl == 1) else 32 * k + 16 * sl)


a(f"s_cmp_eq_u32 {s(sN3)}, 1")
a("s_cbranch_scc0 L_ffn1_2")
ffn1(3)
a("s_branch L_ffn1_done")
a.label("L_ffn1_2")
ffn1(2)
a.label("L_ffn1_done")
stamp(2)
a.lg_reset()
a.vm_reset()
a(f"v_subrev_u32 v150, {L_MISC}, {v(vL16)}")
a(f"v_add_u32 v151, {s(sRING)}, v150")
for t in range(3):
    for q in range(4):
        a.lds(f"ds_write_b128 v151, {v(32 * t + 16 + 4 * q, 4)} offset:{4096 * t + 1024 * q}")
a(f"s_xor_b32 s56, {s(sU)}, 1")
a("s_mul_i32 s56, s56, 12288")
a(f"s_add_u32 s56, s56, {L_GR}")
a("v_add_u32 v151, s56, v150")
a.wait_lg_all()
arrive(C_G1)
spin_lds(C_G1, 4, 154)
for t in range(3):
    for q in range(4):
        a.lds(f"ds_read_b128 {v(32 * t + 16 + 4 * q, 4)}, v151 offset:{4096 * t + 1024 * q}", ("x", t))
a(f"v_mul_f32 v154, {fbits(LOG2E)}, v152")
a(f"s_lshl_b32 s56, {s(sG)}, 1")
a(f"s_add_u32 s56, s56, {s(sKH)}")
a("s_mul_i32 s56, s56, 86")
a(f"s_lshl_b32 s57, {s(sNT)}, 1")
a("s_add_u32 s56, s56, s57")
a("s_lshl_b32 s56, s56, 10")
a(f"s_add_u32 s56, s56, {WS_ACT}")
for t in range(3):
    if t == 2:
        a(f"s_cmp_eq_u32 {s(sN3)}, 1")
        a("s_cbranch_scc0 L_mish_done")
    a.wait_lg(("x", t))
    H, U, W_ = 32 * t, 32 * t + 16, 96
    for i in range(8):
        a(f"v_pk_add_f32 {v(H + 2 * i, 2)}, {v(H + 2 * i, 2)}, {v(U + 2 * i, 2)}")
    for i in range(8):
        a(f"v_pk_mul_f32 {v(U + 2 * i, 2)}, {v(H + 2 * i, 2)}, v[154:155] op_sel_hi:[1,0]")
    for i in range(16):
        a(f"v_exp_f32 {v(U + i)}, {v(U + i)}")
    for i in range(8):
        a(f"v_pk_mul_f32 {v(H + 2 * i, 2)}, {v(H + 2 * i, 2)}, v[152:153] op_sel_hi:[1,0]")
    for i in range(8):
        a(f"v_pk_add_f32 {v(W_ + 2 * i, 2)}, {v(U + 2 * i, 2)}, 2.0 op_sel_hi:[1,0]")
    for i in range(8):
        a(f"v_pk_fma_f32 {v(U + 2 * i, 2)}, {v(U + 2 * i, 2)}, {v(W_ + 2 * i, 2)}, 2.0 op_sel_hi:[1,1,0]")
    for i in range(16):
        a(f"v_rcp_f32 {v(U + i)}, {v(U + i)}")
    for i in range(8):
        a(f"v_pk_fma_f32 {v(U + 2 * i, 2)}, {v(U + 2 * i, 2)}, -2.0, 1.0 op_sel_hi:[1,0,0]")
    for i in range(8):
        a(f"v_pk_mul_f32 {v(H + 2 * i, 2)}, {v(H + 2 * i, 2)}, {v(U + 2 * i, 2)}")
    for i in range(8):
        a(f"v_cvt_pk_bf16_f32 {v(U + i)}, {v(H + 2 * i)}, {v(H + 2 * i + 1)}")
    soff = "s56" if t < 2 else "s57"
    if t == 2:
        a("s_add_u32 s57, s56, 0x1000")
    for u in range(2):
        a.vmem(f"buffer_store_dwordx4 {v(U + 4 * u, 4)}, v150, {s(SRD_WS, 4)}, {soff} offen offset:{(2048 * t + 1024 * u) % 4096} sc1")
a.label("L_mish_done")
stamp(3)
vTA, vDM2, vRES = 128, 130, 132
srd(SRD_A, P_W2, 1376 * 1024)
srd(SRD_B, P_X, 2048 * 1024)
srd(SRD_C, P_WO, 512 * 1024)
srd(SRD_D, P_OUT, 2048 * 1024)
sC, sR = 71, 72
a(f"s_and_b32 {s(sC)}, {s(sU)}, 1")
a(f"s_lshr_b32 {s(sR)}, {s(sU)}, 1")
a(f"v_bfe_u32 v156, {v(LANE)}, 2, 3")
a(f"v_lshlrev_b32 {v(vDM2)}, 10, v156")
a(f"v_lshrrev_b32 v156, 5, {v(LANE)}")
a(f"v_lshl_add_u32 {v(vDM2)}, v156, 6, {v(vDM2)}")
a(f"v_and_b32 v156, 3, {v(LANE)}")
a(f"v_lshl_add_u32 {v(vDM2)}, v156, 4, {v(vDM2)}")
tr_lane(160, 156, 157, 256, LANE)
a(f"s_lshl_b32 s57, {s(sC)}, 9")
a("v_add_u32 v160, s57, v160")
a(f"s_lshl_b32 {s(sRING)}, {s(sU)}, 14")
a(f"v_add_u32 {v(vTA)}, {s(sRING)}, v160")
a(f"v_xor_b32 {v(vTA + 1)}, 0x200, {v(vTA)}")
a(f"v_and_b32 v156, 31, {v(LANE)}")
a(f"v_lshrrev_b32 v157, 5, {v(LANE)}")
a("v_lshlrev_b32 v156, 10, v156")
a("v_lshl_add_u32 v161, v157, 4, v156")
a("v_lshl_add_u32 v156, v157, 3, v156")
sOUT = 73
a(f"s_lshl_b32 {s(sOUT)}, {s(sG)}, 16")
a(f"s_lshl_b32 s57, {s(sR)}, 15")
a(f"s_add_u32 {s(sOUT)}, {s(sOUT)}, s57")
a(f"s_lshl_b32 s57, {s(sJ)}, 7")
a(f"s_add_u32 {s(sOUT)}, {s(sOUT)}, s57")
a(f"s_lshl_b32 s57, {s(sC)}, 6")
a(f"s_add_u32 {s(sOUT)}, {s(sOUT)}, s57")
a.wait_vm_all()
arrive_rtn(C_ACT, 157, 58)
a("s_cmp_eq_u32 s58, 3")
a("s_cbranch_scc0 L_G_noact")
set_flag(0, 157)
a.label("L_G_noact")
for q in range(4):
    a(f"buffer_load_dwordx2 {v(vRES + 2 * q, 2)}, v156, {s(SRD_B, 4)}, {s(sOUT)} offen offset:{16 * q}")
spin_lds(C_Q2, 4, 157)
NS = 22
sW2, sB0, sB1 = 70, 74, 75
a(f"s_mul_i32 {s(sW2)}, {s(sU)}, {NS * 16384}")
a(f"s_lshl_b32 s57, {s(sJ)}, 7")
a(f"s_add_u32 {s(sW2)}, {s(sW2)}, s57")


def w2_dma(t):
    for f in range(2):
        a(f"s_add_u32 m0, {s(sRING)}, {(t % 8) * 2048 + 1024 * f}")
        a.vmem(f"buffer_load_dwordx4 {v(vDM2)}, {s(SRD_A, 4)}, {s(sW2)} offen lds", ("w2", t))
        a(f"s_add_u32 {s(sW2)}, {s(sW2)}, 0x2000")


for t in range(8):
    w2_dma(t)
a(f"s_lshl_b32 s57, {s(sG)}, 1")
a(f"s_add_u32 s58, s57, {s(sR)}")
a("s_mul_i32 s58, s58, 86")
a(f"s_xor_b32 s59, {s(sR)}, 1")
a("s_add_u32 s59, s59, s57")
a("s_mul_i32 s59, s59, 86")
a(f"s_mul_i32 s57, {s(sU)}, {NS}")
a("s_add_u32 s58, s58, s57")
a("s_add_u32 s59, s59, s57")
a(f"s_lshl_b32 {s(sB0)}, s58, 10")
a(f"s_lshl_b32 {s(sB1)}, s59, 10")
a(f"s_add_u32 {s(sB0)}, {s(sB0)}, {WS_ACT}")
a(f"s_add_u32 {s(sB1)}, {s(sB1)}, {WS_ACT}")
a(f"v_subrev_u32 v156, {L_MISC}, {v(vL4)}")
a(f"s_lshl_b32 s60, {s(sG)}, 2")
a("s_add_u32 s60, s60, 128")
poll_global(SRD_DBG, "s60", 1, 157, 156, thresh=8)
sFL = 63
a(f"s_lshl_b32 {s(sFL)}, {s(sG)}, 8")
a(f"s_add_u32 {s(sFL)}, {s(sFL)}, {WS_FLAG}")
poll_global(SRD_WS, s(sFL), 8, 157, 156)
stamp(4)
a.vm_reset()
a.lg_reset()
BQ = lambda t, sl: 64 + 8 * (t % 6) + 4 * sl
AF2 = lambda st, k: 112 + 8 * st + 4 * k


def act_loads(t):
    if t == 20:
        a(f"s_cmp_eq_u32 {s(sU)}, 3")
        a(f"s_cselect_b32 {s(sB0)}, 0x10000000, {s(sB0)}")
        a(f"s_cselect_b32 {s(sB1)}, 0x10000000, {s(sB1)}")
    for sl, sb in ((0, sB0), (1, sB1)):
        a.vmem(f"buffer_load_dwordx4 {v(BQ(t, sl), 4)}, v150, {s(SRD_WS, 4)}, {s(sb)} offen offset:{1024 * (t % 4)} sc1", ("act", t))
    if t % 4 == 3:
        a(f"s_add_u32 {s(sB0)}, {s(sB0)}, 0x1000")
        a(f"s_add_u32 {s(sB1)}, {s(sB1)}, 0x1000")


def w2_reads(t):
    return [(f"ds_read_b64_tr_b16 {v(AF2(t % 2, k) + 2 * f, 2)}, {v(vTA + k)} offset:{(t % 8) * 2048 + 1024 * f}", ("a2", t))
            for k in range(2) for f in range(2)]


for t in range(6):
    act_loads(t)
for x in w2_reads(0):
    a.lds(*x)
for q in range(4):
    for i in range(2):
        a(f"v_lshlrev_b32 {v(4 * q + 2 * i)}, 16, {v(vRES + 2 * q + i)}")
        a(f"v_and_b32 {v(4 * q + 2 * i + 1)}, 0xffff0000, {v(vRES + 2 * q + i)}")
for t in range(NS):
    a.wait_lg(("a2", t))
    if t + 8 < NS:
        w2_dma(t + 8)
    a.wait_vm(("act", t), ("w2", t + 1))
    rd = w2_reads(t + 1) if t + 1 < NS else []
    for sl in range(4):
        if rd:
            a.lds(*rd[sl])
        mfma32(16 * sl, AF2(t % 2, sl & 1), BQ(t, sl >> 1), None if (t == 0 and sl > 0) else 16 * sl)
    if t + 6 < NS:
        act_loads(t + 6)
stamp(5)
for sl in range(1, 4):
    a(f"s_xor_b32 s56, {s(sU)}, {sl}")
    a("s_mul_i32 s56, s56, 12288")
    a(f"s_add_u32 s56, s56, {L_GR + 4096 * (sl - 1)}")
    a(f"v_add_u32 v{151 + sl}, s56, v150")
for sl in range(1, 4):
    for q in range(4):
        a.lds(f"ds_write_b128 v{151 + sl}, {v(16 * sl + 4 * q, 4)} offset:{1024 * q}")
a(f"s_mul_i32 s56, {s(sU)}, 12288")
a(f"s_add_u32 s56, s56, {L_GR}")
a("v_add_u32 v151, s56, v150")
a.wait_lg_all()
arrive(C_G2)
spin_lds(C_G2, 4, 157)
a(f"s_lshl_b32 s56, {s(sU)}, 17")
a(f"s_lshl_b32 s57, {s(sJ)}, 7")
a("s_add_u32 s56, s56, s57")
a(f"s_mov_b32 m0, {s(sRING)}")
for i in range(16):
    a.vmem(f"buffer_load_dwordx4 {v(vDM2)}, {s(SRD_C, 4)}, s56 offen lds")
    if i < 15:
        a("s_add_u32 s56, s56, 0x2000")
        a("s_add_u32 m0, m0, 0x400")
for sl in range(1, 4):
    for q in range(4):
        a.lds(f"ds_read_b128 {v(16 * sl + 4 * q, 4)}, v151 offset:{4096 * (sl - 1) + 1024 * q}", ("y", sl))
for sl in range(1, 4):
    a.wait_lg(("y", sl))
    for i in range(8):
        a(f"v_pk_add_f32 {v(2 * i, 2)}, {v(2 * i, 2)}, {v(16 * sl + 2 * i, 2)}")
a.wait_vm_all()
arrive(C_WO)
spin_lds(C_WO, 4, 157)
stamp(6)
a.lg_reset()
AF3 = lambda h: 144 + 4 * (h % 3)


def wo_reads(h):
    for f in range(2):
        a.lds(f"ds_read_b64_tr_b16 {v(AF3(h) + 2 * f, 2)}, v160 offset:{2048 * h + 1024 * f}", ("wo", h))


a(f"s_lshl_b32 s57, {s(sR)}, 5")
a(f"s_add_u32 s57, s57, {s(sFL)}")
a("s_add_u32 s57, s57, 32")
a(f"s_lshl_b32 s58, {s(sG)}, 16")
a(f"s_lshl_b32 s59, {s(sR)}, 15")
a("s_add_u32 s58, s58, s59")
a(f"s_add_u32 s58, s58, {WS_O}")
a(f"v_mov_b32 v162, v150")
a(f"v_mov_b32 v163, v156")
poll_global(SRD_WS, "s57", 8, 157, 163)
stamp(7)
a.vm_reset()
for h in range(32):
    a.vmem(f"buffer_load_dwordx4 {v(16 + 4 * h, 4)}, v162, {s(SRD_WS, 4)}, s58 offen offset:{1024 * (h % 4)} sc1", ("o", h))
    if h % 4 == 3 and h < 31:
        a("s_add_u32 s58, s58, 0x1000")
wo_reads(0)
wo_reads(1)
for h in range(32):
    if h + 2 < 32:
        wo_reads(h + 2)
    a.wait_lg(("wo", h))
    a.wait_vm(("o", h))
    mfma32(0, AF3(h), 16 + 4 * h, 0)
for i in range(8):
    a(f"v_cvt_pk_bf16_f32 {v(16 + i)}, {v(2 * i)}, {v(2 * i + 1)}")
for k in (0, 4):
    a(f"v_permlane32_swap_b32 {v(16 + k)}, {v(18 + k)}")
    a(f"v_permlane32_swap_b32 {v(17 + k)}, {v(19 + k)}")
for k in range(2):
    a(f"buffer_store_dwordx4 {v(16 + 4 * k, 4)}, v161, {s(SRD_D, 4)}, {s(sOUT)} offen offset:{32 * k}")
stamp(8)
stamps_out(9)
a.label("L_end")
a("s_endpgm")

body = hazard_pass(a.lines, verbose=True)
HEAD = open(os.path.join(os.path.dirname(os.path.abspath(__file__)), "..", "cdna_kernels", NAME + ".s.ref")).read().split("\n")
hdr = [l for l in HEAD if l.startswith(";") and "@launch" not in l and "; v1" not in l]
hdr = hdr[:13]
out = "\n".join(hdr) + "\n"
out += f"; @launch grid=(256,1,1) block=(768,1,1) lds={L_END}\n"
out += f""".amdgcn_target "amdgcn-amd-amdhsa--gfx950"
.text
.globl {NAME}_kernel
.p2align 8
.type {NAME}_kernel,@function
{NAME}_kernel:
"""
out += render(body)
out += f""".section .rodata,"a"
.p2align 6
.amdhsa_kernel {NAME}_kernel
  .amdhsa_next_free_vgpr 168
  .amdhsa_next_free_sgpr 102
  .amdhsa_accum_offset 168
  .amdhsa_group_segment_fixed_size 0
  .amdhsa_kernarg_size 96
  .amdhsa_user_sgpr_count 2
  .amdhsa_user_sgpr_kernarg_segment_ptr 1
  .amdhsa_system_sgpr_workgroup_id_x 1
.end_amdhsa_kernel
"""
open(sys.argv[1], "w").write(out)
print("lines", len(body), "LDS", L_END)
```

```python
import sys, os
sys.path.insert(0, os.path.dirname(os.path.abspath(__file__)))
from asmdsl import Asm, v, s, hazard_pass, render

NAME = "parallel_sum__grouped_kv_mqa__dense_activation_mish__prompt"

OPT = dict(stamps=False, prefetch_code=True, force_fallback=False, gp_f1=1, gp_mish=1, gp_f2=1, gp_tail=1, psleep=4, rot=1, wq_early=8, kvflag_first=1, w1_early=0, w1_mid=0, gate=1, space=0, kvst=0)
for a_ in sys.argv[2:]:
    k_, v_ = a_.split("=")
    OPT[k_] = int(v_)

WS_K = 0x0
WS_V = 0x10000
WS_KVF = 0x20000
WS_E = 0x24000
WS_FLAG = 0x28000
WS_O = 0x40000
WS_ACT = 0x240000
WS_STAMP = 0x800000
WS_SIZE = 0x900000
L_XC = 0
L_MISC = 65536
L_P = L_MISC + 1024
L_W = L_P + 31744
L_GR = L_W + 16384
L_END = L_W + 65536
M_RSTD, M_DEN, M_CNT = 0, 256, 512
C_KV, C_QL, C_Q2, C_KVSEEN, C_MQ, C_MK, C_MKALL, C_G1, C_ACT, C_G2, C_WO, C_O0, C_O1, C_F0, C_F1, C_MX, C_WKV, C_TAG, C_KVL = \
    [M_CNT + 4 * i for i in range(19)]
P0 = L_P - L_MISC
QF = P0
MROW = P0 + 8192
OSUM = P0 + 9216

LOG2E = 1.4426950408889634
import struct
def fbits(x):
    return "0x%08x" % struct.unpack("<I", struct.pack("<f", x))[0]

P_X, P_WQ, P_WK, P_WV, P_WO, P_W1, P_B1, P_W2, P_OUT, P_DBG, P_WS = 8, 10, 12, 14, 16, 20, 22, 24, 26, 28, 30
sW, sG, sJ = 3, 4, 5
SRD_A, SRD_B, SRD_C, SRD_D, SRD_WS, SRD_DBG = 32, 36, 40, 44, 48, 52
sT = 56
sSPIN, sSP2 = 76, 77
sONES = 78
sTAG, sGQ = 6, 7
sSTAMP = 80
vBIG, vL4, vL16, vZ = 164, 165, 166, 167

a = Asm()
nstamp = {}


def srd(dst, ptr, size):
    a(f"s_mov_b32 {s(dst)}, {s(ptr)}")
    a(f"s_mov_b32 {s(dst + 1)}, {s(ptr + 1)}")
    a(f"s_mov_b32 {s(dst + 2)}, {size}")
    a(f"s_mov_b32 {s(dst + 3)}, 0x20000")


def stamp(i):
    if not OPT["stamps"]:
        return
    a(f"{'s_memtime' if OPT['stamps'] == 2 else 's_memrealtime'} {s(sSTAMP + 2 * i, 2)}")
    a.wait_lg_all()


def stamps_out(n):
    if not OPT["stamps"]:
        return
    a("s_waitcnt vmcnt(0) lgkmcnt(0)")
    a(f"s_mul_i32 s56, s2, 12")
    a(f"s_add_u32 s56, s56, {s(sW)}")
    a(f"s_lshl_b32 s56, s56, 6")
    a(f"s_add_u32 s56, s56, {WS_STAMP}")
    a("s_mov_b64 exec, 1")
    for i in range(n):
        a(f"v_mov_b32 v0, {s(sSTAMP + 2 * i)}")
        a(f"buffer_store_dword v0, off, {s(SRD_WS, 4)}, s56 offset:{4 * i}")
    a("s_waitcnt vmcnt(0)")


def arrive(off):
    a("s_mov_b64 exec, 1")
    a.lds(f"ds_inc_u32 {v(vL4)}, {v(vBIG)} offset:{off}")
    a("s_mov_b64 exec, -1")


def arrive_rtn(off, tmp, sdst):
    a("s_mov_b64 exec, 1")
    a.lds(f"ds_inc_rtn_u32 {v(tmp)}, {v(vL4)}, {v(vBIG)} offset:{off}")
    a("s_mov_b64 exec, -1")
    a.wait_lg_all()
    a(f"v_readfirstlane_b32 {s(sdst)}, {v(tmp)}")


def spin_lds(off, n, tmp, sleep=1):
    lo, done = a.newlabel("spin"), a.newlabel("spun")
    a(f"s_mov_b32 {s(sSPIN)}, 0x40000")
    a.label(lo)
    a(f"ds_read_b32 {v(tmp)}, {v(vL4)} offset:{off}")
    a.wait_lg_all()
    a(f"v_readfirstlane_b32 {s(sSP2)}, {v(tmp)}")
    a(f"s_cmp_ge_u32 {s(sSP2)}, {n}")
    a(f"s_cbranch_scc1 {done}")
    if sleep:
        a(f"s_sleep {sleep}")
    a(f"s_sub_u32 {s(sSPIN)}, {s(sSPIN)}, 1")
    a(f"s_cbranch_scc0 {lo}")
    a.label(done)


def poll_flags(soff, nlanes, tmp, addr, wide=False, restore=True):
    lo, done = a.newlabel("poll"), a.newlabel("polled")
    a(f"s_mov_b32 {s(sSPIN)}, 0x8000")
    a(f"s_mov_b32 exec_lo, {hex((1 << nlanes) - 1)}")
    a("s_mov_b32 exec_hi, 0")
    a.label(lo)
    if wide:
        a(f"buffer_load_dwordx2 {v(tmp, 2)}, {v(addr)}, {s(SRD_WS, 4)}, {soff} offen sc1")
    else:
        a(f"buffer_load_dword {v(tmp)}, {v(addr)}, {s(SRD_WS, 4)}, {soff} offen sc1")
    a.wait_vm_all()
    a(f"v_cmp_eq_u32 vcc, {s(sTAG)}, {v(tmp)}")
    a(f"s_cmp_eq_u64 vcc, exec")
    a(f"s_cbranch_scc1 {done}")
    a(f"s_sleep {OPT['psleep']}")
    a(f"s_sub_u32 {s(sSPIN)}, {s(sSPIN)}, 1")
    a(f"s_cbranch_scc0 {lo}")
    a.label(done)
    if restore:
        a("s_mov_b64 exec, -1")


def set_flag(k, tmp):
    a(f"s_lshl_b32 s56, {s(sG)}, 10")
    a(f"s_lshl_b32 s57, {s(sJ)}, 7")
    a("s_add_u32 s56, s56, s57")
    a(f"s_add_u32 s56, s56, {WS_FLAG + 32768 * k}")
    a("s_mov_b64 exec, 1")
    a(f"v_mov_b32 {v(tmp)}, {s(sTAG)}")
    a(f"buffer_store_dword {v(tmp)}, off, {s(SRD_WS, 4)}, s56 sc1")
    a("s_mov_b64 exec, -1")


def tr_swz(dst, t1, t2, hstride, lane):
    a(f"v_lshrrev_b32 {v(t1)}, 5, {v(lane)}")
    a(f"v_mul_u32_u24 {v(dst)}, {hstride}, {v(t1)}")
    a(f"v_bfe_u32 {v(t1)}, {v(lane)}, 2, 2")
    a(f"v_lshl_add_u32 {v(dst)}, {v(t1)}, 7, {v(dst)}")
    a(f"v_bfe_u32 {v(t1)}, {v(lane)}, 3, 1")
    a(f"v_lshl_add_u32 {v(dst)}, {v(t1)}, 6, {v(dst)}")
    a(f"v_bfe_u32 {v(t1)}, {v(lane)}, 4, 1")
    a(f"v_lshl_add_u32 {v(dst)}, {v(t1)}, 5, {v(dst)}")
    a(f"v_and_b32 {v(t1)}, 3, {v(lane)}")
    a(f"v_lshl_add_u32 {v(dst)}, {v(t1)}, 3, {v(dst)}")


def row128(dst, t1, stride, lane):
    a(f"v_lshrrev_b32 {v(t1)}, 3, {v(lane)}")
    a(f"v_mul_u32_u24 {v(dst)}, {stride}, {v(t1)}")
    a(f"v_bfe_u32 {v(t1)}, {v(lane)}, 4, 1")
    a(f"v_lshlrev_b32 {v(t1)}, 2, {v(t1)}")
    a(f"v_xor_b32 {v(t1)}, {v(t1)}, {v(lane)}")
    a(f"v_and_b32 {v(t1)}, 7, {v(t1)}")
    a(f"v_lshl_add_u32 {v(dst)}, {v(t1)}, 4, {v(dst)}")


def mfma32(d, A, B, C=None):
    c = "0" if C is None else v(C, 16)
    a(f"v_mfma_f32_32x32x16_bf16 {v(d, 16)}, {v(A, 4)}, {v(B, 4)}, {c}")


def tr_lane(dst, t1, t2, hstride, lane):
    a(f"v_lshrrev_b32 {v(t1)}, 5, {v(lane)}")
    a(f"v_mul_u32_u24 {v(dst)}, {hstride}, {v(t1)}")
    a(f"v_bfe_u32 {v(t1)}, {v(lane)}, 2, 2")
    a(f"v_lshl_add_u32 {v(dst)}, {v(t1)}, 6, {v(dst)}")
    a(f"v_bfe_u32 {v(t1)}, {v(lane)}, 4, 1")
    a(f"v_lshl_add_u32 {v(dst)}, {v(t1)}, 5, {v(dst)}")
    a(f"v_and_b32 {v(t1)}, 3, {v(lane)}")
    a(f"v_lshl_add_u32 {v(dst)}, {v(t1)}, 3, {v(dst)}")


def xc_addrs(xa, xb, sbase, t1, t2, lane):
    a(f"v_lshrrev_b32 {v(t1)}, 5, {v(lane)}")
    a(f"v_and_b32 {v(t2)}, 31, {v(lane)}")
    a(f"v_xor_b32 {v(t2)}, {v(t1)}, {v(t2)}")
    a(f"v_lshl_add_u32 {v(t1)}, {v(t1)}, 9, {s(sbase)}")
    for var in range(4):
        a(f"v_xor_b32 {v(xa + var)}, {2 * var}, {v(t2)}")
        a(f"v_lshl_add_u32 {v(xa + var)}, {v(xa + var)}, 4, {v(t1)}")
        a(f"v_xor_b32 {v(xb + var)}, 0x8000, {v(xa + var)}")


def finalize(r, u_sgpr):
    a.comment(f"finalize o, row tile {r}")
    T = 96
    spin_lds(C_O0 + 4 * r, 8, T)
    a(f"s_mul_i32 s56, {s(u_sgpr)}, 4608")
    a(f"v_add_u32 {v(T + 12)}, s56, {v(vL4)}")
    for i in (8, 0, 1, 2, 3, 4, 5, 6, 7):
        a.lds(f"ds_read_b64 {v(T + 32 + 2 * i, 2)}, {v(T + 12)} offset:{OSUM + r * 4 * 4608 + 512 * i}", ("fo", i))
    a(f"s_lshl_b32 s56, {s(sG)}, 16")
    a(f"s_lshl_b32 s57, {s(sJ)}, 12")
    a("s_add_u32 s56, s56, s57")
    a(f"s_lshl_b32 s57, {s(u_sgpr)}, 10")
    a("s_add_u32 s56, s56, s57")
    a(f"s_add_u32 s56, s56, {WS_O + r * 32768}")
    a(f"v_subrev_u32 {v(T + 13)}, {L_MISC}, {v(vL16)}")
    a.wait_lg(("fo", 8))
    a(f"v_cvt_f32_f64 {v(T + 8)}, {v(T + 48, 2)}")
    a(f"v_rcp_f32 {v(T + 8)}, {v(T + 8)}")
    a.wait_lg_all()
    for i in range(8):
        a(f"v_cvt_f32_f64 {v(T + i)}, {v(T + 32 + 2 * i, 2)}")
    for i in range(4):
        a(f"v_pk_mul_f32 {v(T + 2 * i, 2)}, {v(T + 2 * i, 2)}, {v(T + 8, 2)} op_sel_hi:[1,0]")
    for i in range(4):
        a(f"v_cvt_pk_bf16_f32 {v(T + 16 + i)}, {v(T + 2 * i)}, {v(T + 2 * i + 1)}")
    a.vmem(f"buffer_store_dwordx4 {v(T + 16, 4)}, {v(T + 13)}, {s(SRD_WS, 4)}, s56 offen sc1")
    a.wait_vm_all()
    arrive_rtn(C_F0 + 4 * r, T, 58)
    skip = a.newlabel("nofl")
    a("s_cmp_eq_u32 s58, 3")
    a(f"s_cbranch_scc0 {skip}")
    set_flag(1 + r, T)
    a.label(skip)


a.label("L_start")
a("s_cmp_ge_u32 s2, 256")
a("s_cbranch_scc1 L_end")
a("s_load_dwordx16 s[8:23], s[0:1], 0")
a("s_load_dwordx8 s[24:31], s[0:1], 64")
if OPT["stamps"]:
    a(f"{'s_memtime' if OPT['stamps'] == 2 else 's_memrealtime'} {s(sSTAMP, 2)}")
a("v_lshrrev_b32 v1, 6, v0")
a(f"v_and_b32 {v(vZ)}, 63, v0")
a(f"v_readfirstlane_b32 {s(sW)}, v1")
a("s_and_b32 s56, s2, 7")
a(f"s_bfe_u32 {s(sGQ)}, s2, 0x20003")
a(f"s_lshl_b32 {s(sG)}, s56, 2")
a(f"s_add_u32 {s(sG)}, {s(sG)}, {s(sGQ)}")
a(f"s_lshr_b32 {s(sJ)}, s2, 5")
LANE = vZ
a(f"s_mov_b32 s62, {WS_E}")
a(f"s_cmp_ge_u32 {s(sW)}, 8")
a("s_cbranch_scc1 L_G")

sRB = 64
a(f"s_lshl_b32 s56, {s(sJ)}, 2")
a(f"s_xor_b32 s56, s56, {s(sW)}")
a("s_and_b32 s56, s56, 4")
a(f"s_lshr_b32 s57, {s(sJ)}, 1")
a(f"s_add_u32 s57, s57, {s(sW)}")
a("s_and_b32 s57, s57, 3")
a(f"s_or_b32 {s(sRB)}, s56, s57")
a(f"v_lshrrev_b32 v160, 3, {v(LANE)}")
a(f"v_and_b32 v161, 7, {v(LANE)}")
a("v_lshlrev_b32 v162, 10, v160")
a("v_lshl_add_u32 v162, v161, 4, v162")
a(f"s_lshl_b32 s56, {s(sG)}, 16")
a(f"s_lshl_b32 s57, {s(sRB)}, 13")
a("s_add_u32 s56, s56, s57")
a("s_waitcnt lgkmcnt(0)")
srd(SRD_WS, P_WS, WS_SIZE)
a(f"buffer_load_dword v110, off, {s(SRD_WS, 4)}, s62 sc1")
srd(SRD_A, P_X, 2048 * 1024)
for i in range(8):
    a(f"buffer_load_dwordx4 {v(4 * i, 4)}, v162, {s(SRD_A, 4)}, s56 offen offset:{128 * i}")
srd(SRD_DBG, P_DBG, 256)
a(f"v_lshlrev_b32 {v(vL4)}, 2, {v(LANE)}")
a(f"v_lshlrev_b32 {v(vL16)}, 4, {v(LANE)}")
a(f"v_add_u32 {v(vL4)}, {L_MISC}, {v(vL4)}")
a(f"v_add_u32 {v(vL16)}, {L_MISC}, {v(vL16)}")
a(f"v_mov_b32 {v(vBIG)}, 0xdddd")
a("v_mov_b32 v108, 0")
a("v_mov_b32 v109, 0")
a(f"s_cmp_eq_u32 {s(sW)}, 4")
a("s_cbranch_scc0 L_A_n4")
a(f"ds_write_b32 {v(vL4)}, v108 offset:{M_CNT}")
if OPT["prefetch_code"]:
    a.comment("and pull a slice of the kernel's own code into L2 ahead of the instruction fetch")
    a("s_getpc_b64 s[60:61]")
    a.label("L_pcref")
    a("s_lshr_b32 s57, s2, 3")
    a("s_mul_i32 s57, s57, 1280")
    a(f"v_min_u32 v96, 9, {v(LANE)}")
    a("v_lshl_add_u32 v96, v96, 7, s57")
    a("v_min_u32 v96, L_end-L_pcref, v96")
    a("global_load_dword v111, v96, s[60:61]")
a("s_waitcnt lgkmcnt(0)")
a.label("L_A_n4")
a("s_barrier")
a(f"s_and_b32 s57, {s(sRB)}, 3")
a("s_lshl_b32 s57, s57, 3")
a("v_add_u32 v163, s57, v160")
a("v_xor_b32 v163, v163, v161")
a("v_lshlrev_b32 v163, 4, v163")
a("v_lshrrev_b32 v96, 1, v161")
a("v_lshl_add_u32 v163, v96, 10, v163")
a("v_and_b32 v96, 1, v161")
a("v_lshl_add_u32 v163, v96, 9, v163")
a(f"s_lshr_b32 s57, {s(sRB)}, 2")
a("s_lshl_b32 s57, s57, 15")
a("v_add_u32 v163, s57, v163")
a(f"s_lshl_b32 s57, {s(sRB)}, 5")
a(f"s_add_u32 s57, s57, {L_MISC}")
a("v_lshl_add_u32 v162, v160, 2, s57")
a("s_mov_b32 s60, 0x3f803f80")
a("s_mov_b32 s61, 0x00003f80")
for i in range(4):
    a(f"v_mov_b32 v{96 + i}, 0")
a(f"s_cmp_ge_u32 {s(sW)}, 4")
a("s_cbranch_scc1 L_A_hi1")
a("s_setprio 2")
a("s_waitcnt vmcnt(8)")
a(f"buffer_load_dwordx2 v[112:113], off, {s(SRD_DBG, 4)}, 0 sc1")
a("s_cmp_eq_u32 s2, 0")
a(f"s_cselect_b32 s57, {s(sW)}, 1")
a("s_cmp_eq_u32 s57, 0")
a("s_cbranch_scc0 L_A_lo1")
a("v_add_u32 v115, 1, v110")
a("v_mov_b32 v114, 1")
a("s_mov_b64 exec, 1")
a(f"buffer_store_dwordx2 v[114:115], off, {s(SRD_DBG, 4)}, 0 sc1")
a("s_waitcnt vmcnt(0)")
a(f"buffer_store_dword v115, off, {s(SRD_WS, 4)}, s62 sc1")
a("s_mov_b64 exec, -1")
a.label("L_A_lo1")
a("s_waitcnt vmcnt(1)")
a("s_branch L_A_go")
a.label("L_A_hi1")
a("s_waitcnt vmcnt(0)")
a.label("L_A_go")
a("s_mov_b32 s62, 0x3f800000")
stamp(1)
for i in range(32):
    a(f"v_dot2c_f32_bf16 v{96 + i % 4}, s60, v{i}")
a("v_add_f32 v96, v96, v97")
a("v_add_f32 v98, v98, v99")
a("v_add_f32 v96, v96, v98")


def red8(r):
    a(f"v_add_f32_dpp {v(r)}, {v(r)}, {v(r)} quad_perm:[1,0,3,2] row_mask:0xf bank_mask:0xf")
    a(f"v_add_f32_dpp {v(r)}, {v(r)}, {v(r)} quad_perm:[2,3,0,1] row_mask:0xf bank_mask:0xf")
    a(f"v_add_f32_dpp {v(r)}, {v(r)}, {v(r)} row_half_mirror row_mask:0xf bank_mask:0xf")


red8(96)
a(f"v_mul_f32 v97, {fbits(-1.0 / 512)}, v96")
a("v_cvt_pk_bf16_f32 v98, v97, v97")
a("v_lshlrev_b32 v98, 16, v98")
a("v_sub_f32 v99, v97, v98")
a(f"s_lshr_b32 s57, {s(sJ)}, 2")
a(f"s_lshr_b32 s58, {s(sW)}, 2")
a("s_or_b32 s57, s57, s58")
a("s_cbranch_scc1 L_A_now")
a(f"s_mov_b32 s59, {L_P}")
a(f"v_lshl_add_u32 v114, {v(LANE)}, 3, s59")
spin_lds(C_WKV, 4, 115, sleep=0)
for st in range(16):
    for f in range(2):
        a(f"ds_read_b64_tr_b16 {v(32 + 4 * st + 2 * f, 2)}, v114 offset:{1024 * st + 512 * f}")
a.label("L_A_now")
for i in range(32 + 3):
    if i < 32:
        t = 100 + 2 * (i % 4)
        a(f"v_dot2_f32_bf16 v{t}, v{i}, s61, v98")
        a(f"v_dot2_f32_bf16 v{t + 1}, v{i}, s62, v98")
    k = i - 2
    if 0 <= k < 32:
        t = 100 + 2 * (k % 4)
        a(f"v_cvt_pk_bf16_f32 v{k}, v{t}, v{t + 1}")
    k = i - 3
    if 0 <= k < 32:
        a(f"v_dot2c_f32_bf16 v{108 + k % 2}, v{k}, v{k}")
        if k % 4 == 3:
            a.lds(f"ds_write_b128 v163, {v(k - 3, 4)} offset:{4096 * (k // 4)}")
a("v_add_f32 v108, v108, v109")
red8(108)
a(f"v_mul_f32 v108, {fbits(1.0 / 512)}, v108")
a("v_fma_f32 v108, -v99, v99, v108")
a("v_max_f32 v108, 0, v108")
a("v_cvt_pk_bf16_f32 v108, v108, v108")
a("v_lshlrev_b32 v108, 16, v108")
a(f"v_add_f32 v108, {fbits(1e-5)}, v108")
a("v_cvt_pk_bf16_f32 v108, v108, v108")
a("v_lshlrev_b32 v108, 16, v108")
a("v_sqrt_f32 v108, v108")
a("v_cvt_pk_bf16_f32 v109, v108, 0")
a("v_lshlrev_b32 v108, 16, v109")
a("v_rcp_f32 v108, v108")
a.lds(f"ds_write_b32 v162, v109 offset:{M_DEN}")
a.lds(f"ds_write_b32 v162, v108 offset:{M_RSTD}")
a(f"s_cmp_ge_u32 {s(sW)}, 4")
a("s_cbranch_scc1 L_A_hi2")

a(f"v_lshrrev_b32 v12, 4, {v(LANE)}")
a(f"v_and_b32 v13, 15, {v(LANE)}")
a(f"v_and_b32 v11, 7, {v(LANE)}")
a(f"s_and_b32 s59, {s(sRB)}, 3")
a("s_lshl_b32 s59, s59, 3")
a("v_add_u32 v14, s59, v11")
a("v_xor_b32 v14, v14, v12")
a("v_lshrrev_b32 v15, 1, v12")
a("v_lshlrev_b32 v15, 10, v15")
a("v_and_b32 v16, 1, v12")
a("v_lshl_add_u32 v15, v16, 9, v15")
a(f"s_lshr_b32 s59, {s(sRB)}, 2")
a("s_lshl_b32 s59, s59, 15")
a("v_add_u32 v15, s59, v15")
a("v_lshl_add_u32 v8, v14, 4, v15")
a("v_xor_b32 v14, 4, v14")
a("v_lshl_add_u32 v9, v14, 4, v15")
a(f"v_mov_b32 v19, {L_MISC}")
stamp(2)
a(f"s_cmp_lt_u32 {s(sJ)}, 4")
a("s_cbranch_scc0 L_A_nokv")


def read_tag():
    a(f"v_readfirstlane_b32 {s(sTAG)}, v110")
    a("v_readfirstlane_b32 s58, v112")
    a("v_readfirstlane_b32 s59, v113")
    a(f"s_add_u32 {s(sTAG)}, {s(sTAG)}, 1")
    a("s_cmp_eq_u32 s58, 0")
    a(f"s_cselect_b32 {s(sTAG)}, {s(sTAG)}, s59")
    a(f"v_mov_b32 v18, {s(sTAG)}")
    a(f"ds_write_b32 v19, v18 offset:{C_TAG}")


def kv_reads(st):
    a.lds(f"ds_read_b128 {v(116 + 4 * (st % 11), 4)}, v{8 + st % 2} offset:{2048 * st}", ("kv", st))


def kv_body(isv):
    a.lg_reset()
    for st in range(11):
        kv_reads(st)
    for st in range(16):
        a.wait_lg(("kv", st))
        xf, wf = 116 + 4 * (st % 11), 32 + 4 * st
        A_, B_ = (xf, wf) if isv else (wf, xf)
        acc = 4 * (st % 2)
        c = "0" if st < 2 else v(acc, 4)
        a(f"v_mfma_f32_16x16x32_bf16 {v(acc, 4)}, {v(A_, 4)}, {v(B_, 4)}, {c}")
        if st + 11 < 16:
            kv_reads(st + 11)


a(f"s_lshl_b32 s59, {s(sRB)}, 5")
a(f"s_add_u32 s59, s59, {L_MISC + M_RSTD}")
a(f"s_lshl_b32 s60, {s(sG)}, 11")
a(f"s_cmp_lt_u32 {s(sJ)}, 2")
a("s_cbranch_scc0 L_kv_v")
a("v_lshl_add_u32 v16, v11, 2, s59")
a("ds_read_b32 v20, v16")
a("v_and_b32 v16, 1, v12")
a("v_lshlrev_b32 v16, 9, v16")
a("v_lshl_add_u32 v16, v11, 4, v16")
a("v_lshrrev_b32 v17, 1, v12")
a("v_lshl_add_u32 v16, v17, 3, v16")
a(f"s_lshr_b32 s59, {s(sRB)}, 2")
a("s_lshl_b32 s59, s59, 10")
a("s_add_u32 s60, s60, s59")
a(f"s_and_b32 s59, {s(sRB)}, 3")
a("s_lshl_b32 s59, s59, 7")
a("s_add_u32 s60, s60, s59")
if WS_K:
    a(f"s_add_u32 s60, s60, {WS_K}")
kv_body(False)
a("s_mov_b32 s58, 0x00ff00ff")
a("s_mov_b32 s59, 0x00ff00ff")
a("v_pk_add_f32 v[0:1], v[0:1], v[4:5]")
a("v_pk_add_f32 v[2:3], v[2:3], v[6:7]")
a("v_pk_mul_f32 v[0:1], v[0:1], v[20:21] op_sel_hi:[1,0]")
a("v_pk_mul_f32 v[2:3], v[2:3], v[20:21] op_sel_hi:[1,0]")
a("v_cvt_pk_bf16_f32 v4, v0, v1")
a("v_cvt_pk_bf16_f32 v5, v2, v3")
a("s_mov_b64 exec, s[58:59]")
a(f"buffer_store_dwordx2 v[4:5], v16, {s(SRD_WS, 4)}, s60 offen sc1")
a("s_mov_b64 exec, -1")
a("v_dot2_f32_bf16 v6, v4, v4, 0")
a("v_dot2_f32_bf16 v6, v5, v5, v6")
a("v_mov_b32 v7, v6")
a("v_permlane32_swap_b32 v6, v7")
a("v_add_f32 v6, v6, v7")
a("s_branch L_kv_pub")
a.label("L_kv_v")
a("v_and_b32 v16, 1, v12")
a("v_lshl_add_u32 v16, v16, 4, s59")
a("ds_read_b128 v[20:23], v16")
a("v_lshlrev_b32 v16, 4, v13")
a("v_lshl_add_u32 v16, v12, 3, v16")
a(f"s_lshl_b32 s59, {s(sRB)}, 8")
a("s_add_u32 s60, s60, s59")
a(f"s_add_u32 s60, s60, {WS_V}")
kv_body(True)
a("v_pk_add_f32 v[0:1], v[0:1], v[4:5]")
a("v_pk_add_f32 v[2:3], v[2:3], v[6:7]")
a("v_pk_mul_f32 v[0:1], v[0:1], v[20:21]")
a("v_pk_mul_f32 v[2:3], v[2:3], v[22:23]")
a("v_cvt_pk_bf16_f32 v4, v0, v1")
a("v_cvt_pk_bf16_f32 v5, v2, v3")
a("s_mov_b32 exec_hi, 0")
a(f"buffer_store_dwordx2 v[4:5], v16, {s(SRD_WS, 4)}, s60 offen sc1")
a("s_mov_b64 exec, -1")
a("v_dot2_f32_bf16 v6, v4, v4, 0")
a("v_dot2_f32_bf16 v6, v5, v5, v6")
a(f"v_mov_b32 v7, 0x7f800000")
a(f"v_cmp_ge_f32 vcc, {fbits(2.0 ** 100)}, v6")
a("v_cndmask_b32_e64 v6, v7, 0, vcc")
a.label("L_kv_pub")
a(f"ds_max_u32 v19, v6 offset:{C_MK}")
if OPT["kvst"]:
    stamp(8)
a("s_waitcnt vmcnt(0) lgkmcnt(0)")
if OPT["kvst"]:
    stamp(9)
a.lg_reset()
read_tag()
arrive_rtn(C_KV, 6, 59)
a("s_cmp_eq_u32 s59, 3")
a("s_cbranch_scc0 L_A_kvdone")
a(f"ds_read_b32 v5, v19 offset:{C_MK}")
a(f"v_mov_b32 v4, {s(sTAG)}")
a(f"s_lshl_b32 s59, {s(sG)}, 2")
a(f"s_add_u32 s59, s59, {s(sJ)}")
a("s_lshl_b32 s59, s59, 7")
a(f"s_add_u32 s59, s59, {WS_KVF}")
a("s_mov_b64 exec, 1")
a.wait_lg_all()
a(f"buffer_store_dwordx2 v[4:5], off, {s(SRD_WS, 4)}, s59 sc1")
a("s_mov_b64 exec, -1")
a("s_branch L_A_kvdone")
a.label("L_A_nokv")
a("s_waitcnt vmcnt(0)")
read_tag()
a.label("L_A_kvdone")
stamp(3)
a("s_setprio 0")
a("s_waitcnt lgkmcnt(0)")
a("s_barrier")
for i in range(4):
    a(f"v_mov_b32 v{16 + i}, 0")
a(f"s_lshl_b32 s59, {s(sW)}, 11")
a(f"v_add_u32 v13, s59, {v(vL16)}")
a(f"s_cmp_lt_u32 {s(sJ)}, 4")
a("s_cbranch_scc0 L_A_z1")
spin_lds(C_KV, 4, 12)
a.label("L_A_z1")
for q in range(2):
    a.lds(f"ds_write_b128 v13, v[16:19] offset:{P0 + 8192 + 1024 * q}")
a("v_mov_b32 v20, 0xff800000")
a.wait_lg_all()
a(f"s_cmp_eq_u32 {s(sW)}, 0")
a("s_cbranch_scc0 L_A_z2")
for q in range(4):
    a(f"ds_write_b32 {v(vL4)}, v20 offset:{MROW + 256 * q}")
a.label("L_A_z2")
a("s_branch L_A_noq")

a.label("L_A_hi2")
a(f"s_and_b32 s57, {s(sW)}, 1")
a(f"s_bfe_u32 s58, {s(sW)}, 0x10001")
a("s_lshl_b32 s59, s58, 15")
xc_addrs(80, 84, 59, 96, 97, LANE)
tr_swz(88, 96, 97, 1024, LANE)
a("s_lshl_b32 s60, s57, 6")
a("v_xor_b32 v88, s60, v88")
a(f"v_add_u32 v88, {L_W}, v88")
a("s_lshl_b32 s59, s58, 7")
a(f"v_and_b32 v90, 31, {v(LANE)}")
a("v_lshl_add_u32 v90, v90, 2, s59")
a(f"v_add_u32 v90, {L_MISC}, v90")
a.wait_lg_all()
a("s_barrier")
stamp(2)
a.lds(f"ds_read_b32 v92, v90 offset:{M_RSTD}")
a.lds(f"ds_read_b32 v94, {v(vL4)} offset:{C_TAG}")
QD = 4


def q_reads(t):
    f0 = 8 * (t % (QD + 1))
    a.lds(f"ds_read_b128 {v(f0 + 4, 4)}, v{80 + t % 4} offset:{1024 * t}", ("q", t))
    for f in range(2):
        a.lds(f"ds_read_b64_tr_b16 {v(f0 + 2 * f, 2)}, v88 offset:{2048 * t + 512 * f}", ("q", t))


for t in range(QD):
    q_reads(t)
for t in range(32):
    if t + QD < 32:
        q_reads(t + QD)
    a.wait_lg(("q", t))
    f0 = 8 * (t % (QD + 1))
    mfma32(96, f0, f0 + 4, None if t == 0 else 96)
arrive(C_QL)
stamp(3)
a(f"v_readfirstlane_b32 {s(sTAG)}, v94")
a(f"v_mul_f32 v92, {fbits(0.25 * LOG2E)}, v92")
a("v_mov_b32 v16, 0")
a("v_mov_b32 v17, 0")
a(f"v_mov_b32 v18, {L_MISC}")
a("s_lshl_b32 s59, s58, 12")
a("s_lshl_b32 s60, s57, 11")
a("s_add_u32 s59, s59, s60")
a(f"v_add_u32 v13, s59, {v(vL16)}")
a(f"s_cmp_lt_u32 {s(sJ)}, 4")
a("s_cbranch_scc0 L_q_nokvwait")
spin_lds(C_KV, 4, 10)
a.label("L_q_nokvwait")
for i in range(8):
    a(f"v_pk_mul_f32 {v(96 + 2 * i, 2)}, {v(96 + 2 * i, 2)}, v[92:93] op_sel_hi:[1,0]")
for i in range(8):
    a(f"v_cvt_pk_bf16_f32 {v(144 + i)}, {v(96 + 2 * i)}, {v(97 + 2 * i)}")
    if i % 4 == 3:
        a.lds(f"ds_write_b128 v13, {v(141 + i, 4)} offset:{QF + 1024 * (i // 4)}")
for i in range(4):
    a(f"v_dot2c_f32_bf16 v16, v{144 + i}, v{144 + i}")
    a(f"v_dot2c_f32_bf16 v17, v{148 + i}, v{148 + i}")
a("v_max_u32 v16, v16, v17")
a.lds(f"ds_max_u32 v18, v16 offset:{C_MQ}")
a.wait_lg_all()
arrive(C_Q2)
a.label("L_A_noq")
stamp(4)

vK, vV, vS, vO, vQ = 0, 32, 96, 128, 160
a(f"s_mov_b32 {s(sONES)}, 0x3f803f80")
a(f"s_mov_b32 {s(sONES + 1)}, 0x3f803f80")
a("s_waitcnt vmcnt(0)")
for i in range(32):
    a(f"v_pk_mov_b32 {v(vV + 2 * i, 2)}, {s(sONES, 2)}, {s(sONES, 2)}")
for i in range(9):
    a(f"v_mov_b32 {v(vO + i)}, 0")
    a(f"v_mov_b32 {v(vO + 16 + i)}, 0")
a(f"s_mov_b32 s57, {L_MISC}")
a(f"v_lshl_add_u32 {v(vL4)}, {v(LANE)}, 3, s57")
a(f"v_lshlrev_b32 v96, 4, {v(LANE)}")
a(f"v_lshrrev_b32 v97, 5, {v(LANE)}")
a(f"v_and_b32 v98, 15, {v(LANE)}")
a("v_lshlrev_b32 v97, 8, v97")
a("v_lshl_add_u32 v97, v98, 4, v97")
sKR = 65
if OPT["rot"]:
    a(f"s_lshl_b32 s57, {s(sGQ)}, 1")
    a(f"s_add_u32 s57, s57, {s(sJ)}")
    a(f"s_add_u32 s57, s57, {s(sW)}")
    a(f"s_and_b32 {s(sKR)}, s57, 7")
else:
    a(f"s_mov_b32 {s(sKR)}, {s(sW)}")
a(f"s_cmp_ge_u32 {s(sW)}, 4")
a("s_cbranch_scc1 L_A_nopoll")
a(f"v_and_b32 v98, 15, {v(LANE)}")
a(f"v_bfe_u32 v99, {v(LANE)}, 4, 1")
a(f"v_lshl_add_u32 v99, v99, 2, {s(sKR)}")
a("v_and_b32 v99, 7, v99")
a("v_lshlrev_b32 v98, 7, v98")
a("v_lshl_add_u32 v98, v99, 11, v98")
a(f"s_mov_b32 s57, {WS_KVF}")
poll_flags("s57", 32, 100, 98, wide=True, restore=False)
a(f"v_mov_b32 v98, {L_MISC}")
a.lds(f"ds_max_u32 v98, v101 offset:{C_MKALL}")
a("s_mov_b64 exec, -1")
a.wait_lg_all()
arrive(C_KVSEEN)
a("s_branch L_A_polled")
a.label("L_A_nopoll")
spin_lds(C_KVSEEN, 4, 99)
a.label("L_A_polled")
stamp(5)
a(f"s_lshl_b32 s57, {s(sKR)}, 13")
if WS_K:
    a(f"s_add_u32 s57, s57, {WS_K}")
a(f"s_add_u32 s58, s57, {WS_V - WS_K}")
a("s_add_u32 s59, s57, 0x1000")
a("s_add_u32 s60, s58, 0x1000")
a("s_mov_b32 s62, 0x0000ffff")
a("s_mov_b32 s63, 0x0000ffff")
a.vm_reset()
for T in range(8):
    a.vmem(f"buffer_load_dwordx4 {v(vK + 4 * T, 4)}, v96, {s(SRD_WS, 4)}, s{57 if T < 4 else 59} offen offset:{1024 * (T % 4)} sc1", ("K", T))
    a("s_mov_b64 exec, s[62:63]")
    for u in range(2):
        b = 2 * T + u
        a.vmem(f"buffer_load_dwordx4 {v(vV + 4 * b, 4)}, v97, {s(SRD_WS, 4)}, s{58 if b < 8 else 60} offen offset:{512 * (b % 8)} sc1", ("V", b))
    a("s_mov_b64 exec, -1")
arrive(C_KVL)
a(f"s_cmp_ge_u32 {s(sW)}, 4")
a("s_cbranch_scc1 L_A_z3")
for i in range(4):
    a(f"v_mov_b32 v{100 + i}, 0")
a(f"s_lshl_b32 s59, {s(sW)}, 12")
a(f"v_add_u32 v104, s59, {v(vL16)}")
spin_lds(C_QL, 4, 99)
for q in range(4):
    a.lds(f"ds_write_b128 v104, v[100:103] offset:{L_W - L_MISC + 1024 * q}")
a.wait_lg_all()
arrive(C_Q2)
a.label("L_A_z3")
spin_lds(C_KVSEEN, 4, 99)
spin_lds(C_Q2, 8, 99)
a.lds(f"ds_read_b32 v98, {v(vL4)} offset:{C_MQ}")
a.lds(f"ds_read_b32 v99, {v(vL4)} offset:{C_MKALL}")
a.lds(f"ds_read_b128 {v(vQ, 4)}, {v(vL16)} offset:{QF}")
a.wait_lg_all()
a("v_readfirstlane_b32 s57, v98")
a("v_readfirstlane_b32 s58, v99")
a("v_mov_b32 v98, s57")
a("v_mul_f32 v98, s58, v98")
a(f"v_cmp_ge_f32 vcc, {fbits(1024.0 if not OPT['force_fallback'] else -1.0)}, v98")
a("s_cbranch_vccz L_fallback")
a(f"v_mov_b32 {v(vZ)}, 0")

vm_saved = list(a.vm)


def qk(dst, T):
    a.wait_vm(("K", T))
    mfma32(dst, vK + 4 * T, vQ, None)


def pv(o, b, src):
    a.wait_vm(("V", b))
    a(f"v_smfmac_f32_32x32x32_bf16 {v(o, 16)}, {v(vV + 4 * b, 4)}, {v(src, 8)}, {v(vBIG)}")


def osum_add(qt, i):
    o = vO + 16 * (qt % 2)
    t = o + 10 + 2 * (i % 3)
    a(f"v_cvt_f64_f32 {v(t, 2)}, {v(o + i)}")
    a.lds(f"ds_add_f64 {v(vL4)}, {v(t, 2)} offset:{OSUM + qt * 4608 + 512 * i}", ("os", qt))


qk(vS, 0)
stamp(6)
for qt in range(8):
    o = vO + 16 * (qt % 2)
    for T in range(8):
        n = qt * 8 + T
        S = vS + 16 * (n % 2)
        Sn = vS + 16 * (1 - n % 2)
        e = lambda i: a(f"v_exp_f32 {v(S + i)}, {v(S + i)}")
        e(0); e(1)
        if n > 0:
            if T == 0:
                pv(vO + 16 * ((qt - 1) % 2), 15, Sn + 8)
            else:
                pv(o, 2 * T - 1, Sn + 8)
        e(2); e(3); e(4)
        if n < 63:
            if T == 7:
                a.wait_lg(("Q", qt + 1))
            qk(Sn, (T + 1) % 8)
        if T == 6 and qt < 7:
            a.lds(f"ds_read_b128 {v(vQ, 4)}, {v(vL16)} offset:{QF + 1024 * (qt + 1)}", ("Q", qt + 1))
        e(5); e(6); e(7); e(8); e(9)
        pv(o, 2 * T, S)
        extra = []
        if T == 0 and qt > 0:
            extra = [None, None, None, (0, 1, 2), (3, 4), ()]
        elif T == 1 and qt > 0:
            extra = [(5, 6), (7, 8), None, None, None, None]
        for i in range(10, 16):
            e(i)
            if extra and extra[i - 10]:
                for k in extra[i - 10]:
                    osum_add(qt - 1, k)
        if T == 3 and 0 < qt < 7:
            op = vO + 16 * ((qt - 1) % 2)
            a(f"v_mfma_f32_32x32x2_f32 {v(op, 16)}, {v(vZ)}, {v(vZ)}, 0")
        if T == 3 and qt == 4:
            a.wait_lg(("os", 3))
            arrive(C_O0)
pv(vO + 16, 15, vS + 16 + 8)
for i in range(9):
    osum_add(7, i)
a.wait_lg_all()
arrive(C_O1)
a.label("L_A_attn_done")
stamp(7)
a(f"s_cmp_ge_u32 {s(sW)}, 4")
a("s_cbranch_scc1 L_A_end")
finalize(0, sW)
if not OPT["kvst"]:
    stamp(8)
finalize(1, sW)
if not OPT["kvst"]:
    stamp(9)
a.label("L_A_end")
stamps_out(10)
a("s_endpgm")

a.label("L_fallback")
a("s_waitcnt vmcnt(0)")
a.vm_reset()
a.lg_reset()
a(f"v_and_b32 v144, 31, {v(LANE)}")
a("v_lshlrev_b32 v144, 2, v144")
a(f"v_add_u32 v144, {L_MISC}, v144")
a(f"v_mov_b32 v145, {v(vL16)}")
a("s_mov_b32 s57, 0")
a.label("L_fb1")
a(f"ds_read_b128 {v(vQ, 4)}, v145 offset:{QF}")
a("v_mov_b32 v146, 0xff800000")
a("s_waitcnt lgkmcnt(0)")
for T in range(8):
    mfma32(vS, vK + 4 * T, vQ, None)
    for i in range(8):
        a(f"v_max3_f32 v146, v146, {v(vS + 2 * i)}, {v(vS + 2 * i + 1)}")
a(f"ds_max_f32 v144, v146 offset:{MROW}")
a("v_add_u32 v144, 128, v144")
a("v_add_u32 v145, 1024, v145")
a("s_add_u32 s57, s57, 1")
a("s_cmp_lt_u32 s57, 8")
a("s_cbranch_scc1 L_fb1")
a.wait_lg_all()
arrive(C_MX)
spin_lds(C_MX, 8, 146)
a("v_subrev_u32 v144, 1024, v144")
a(f"v_mov_b32 v145, {v(vL16)}")
a(f"v_mov_b32 v147, {v(vL4)}")
a("s_mov_b32 s57, 0")
a.label("L_fb2")
a(f"ds_read_b128 {v(vQ, 4)}, v145 offset:{QF}")
a(f"ds_read_b32 v146, v144 offset:{MROW}")
for i in range(16):
    a(f"v_mov_b32 {v(vO + i)}, 0")
a("s_waitcnt lgkmcnt(0)")
for T in range(8):
    mfma32(vS, vK + 4 * T, vQ, None)
    for i in range(16):
        a(f"v_sub_f32 {v(vS + i)}, {v(vS + i)}, v146")
    for i in range(16):
        a(f"v_exp_f32 {v(vS + i)}, {v(vS + i)}")
    for u in range(2):
        a(f"v_smfmac_f32_32x32x32_bf16 {v(vO, 16)}, {v(vV + 4 * (2 * T + u), 4)}, {v(vS + 8 * u, 8)}, {v(vBIG)}")
for i in range(9):
    a(f"v_cvt_f64_f32 {v(148 + 2 * (i % 4), 2)}, {v(vO + i)}")
    a(f"ds_add_f64 v147, {v(148 + 2 * (i % 4), 2)} offset:{OSUM + 512 * i}")
a("v_add_u32 v144, 128, v144")
a("v_add_u32 v145, 1024, v145")
a("v_add_u32 v147, 4608, v147")
a("s_waitcnt lgkmcnt(0)")
a("s_add_u32 s57, s57, 1")
a("s_cmp_eq_u32 s57, 4")
a("s_cbranch_scc0 L_fb2n")
arrive(C_O0)
a.label("L_fb2n")
a("s_cmp_lt_u32 s57, 8")
a("s_cbranch_scc1 L_fb2")
arrive(C_O1)
a.lg_reset()
a("s_branch L_A_attn_done")

a.label("L_G")
sU, sP, sKH, sNT = 64, 65, 66, 67
a(f"s_sub_u32 {s(sU)}, {s(sW)}, 8")
a(f"s_lshr_b32 {s(sP)}, {s(sU)}, 1")
a(f"s_and_b32 {s(sKH)}, {s(sU)}, 1")
a(f"s_max_u32 s56, {s(sJ)}, 1")
a("s_sub_u32 s56, s56, 1")
a("s_min_u32 s56, s56, 3")
a(f"s_mul_i32 {s(sNT)}, {s(sJ)}, 5")
a(f"s_add_u32 {s(sNT)}, {s(sNT)}, s56")
a(f"s_mul_i32 s56, {s(sP)}, 3")
a(f"s_add_u32 {s(sNT)}, {s(sNT)}, s56")
sN3 = 68
a(f"s_sub_u32 s56, {s(sJ)}, 1")
a("s_cmp_lt_u32 s56, 3")
a(f"s_cselect_b32 {s(sN3)}, 1, 0")
a(f"s_cmp_eq_u32 {s(sP)}, 0")
a(f"s_cselect_b32 {s(sN3)}, 1, {s(sN3)}")
vXA, vXB, vTR, vDMA = 136, 140, 144, 146
sRING, sW1 = 69, 70
a(f"s_mul_i32 {s(sRING)}, {s(sU)}, 12288")
a(f"s_add_u32 {s(sRING)}, {s(sRING)}, {L_GR}")
a(f"s_mul_i32 {s(sW1)}, {s(sKH)}, {256 * 2752}")
a(f"s_lshl_b32 s56, {s(sNT)}, 6")
a(f"s_add_u32 {s(sW1)}, {s(sW1)}, s56")
if OPT["rot"]:
    a(f"s_mul_i32 s56, {s(sGQ)}, {64 * 2752}")
    a(f"s_add_u32 {s(sW1)}, {s(sW1)}, s56")
a("s_waitcnt lgkmcnt(0)")
srd(SRD_WS, P_WS, WS_SIZE)
a(f"s_cmp_lt_u32 {s(sJ)}, 4")
a("s_cbranch_scc0 L_G_nokv")
a(f"s_cmp_lt_u32 {s(sJ)}, 2")
a(f"s_cselect_b32 {s(SRD_C)}, {s(P_WK)}, {s(P_WV)}")
a(f"s_cselect_b32 {s(SRD_C + 1)}, {s(P_WK + 1)}, {s(P_WV + 1)}")
a(f"s_mov_b32 {s(SRD_C + 2)}, 16384")
a(f"s_mov_b32 {s(SRD_C + 3)}, 0x20000")
a(f"v_bfe_u32 v150, {v(LANE)}, 3, 2")
a(f"v_lshrrev_b32 v151, 5, {v(LANE)}")
a("v_lshl_add_u32 v150, v150, 1, v151")
a(f"v_and_b32 v151, 7, {v(LANE)}")
a("v_lshlrev_b32 v151, 4, v151")
a("v_lshl_add_u32 v150, v150, 7, v151")
a(f"s_lshl_b32 s56, {s(sU)}, 12")
a(f"s_add_u32 m0, s56, {L_P}")
for i in range(4):
    a(f"buffer_load_dwordx4 v150, {s(SRD_C, 4)}, s56 offen offset:{1024 * i} lds")
a.label("L_G_nokv")
srd(SRD_A, P_W1, 512 * 2752)
srd(SRD_B, P_B1, 2752)
AF = lambda st, t: 96 + 12 * st + 4 * t
BF = lambda st, sl: 120 + 8 * st + 4 * sl
a(f"v_lshlrev_b32 v150, 1, {v(LANE)}")
a(f"v_cmp_gt_u32 vcc, 32, {v(LANE)}")
a("v_mov_b32 v151, 0x10000")
a("v_cndmask_b32 v150, v151, v150, vcc")
a(f"s_lshl_b32 s56, {s(sNT)}, 6")
for t in range(3):
    a(f"buffer_load_ushort {v(AF(1, t))}, v150, {s(SRD_B, 4)}, s56 offen offset:{64 * t}")
a(f"v_lshlrev_b32 {v(vL4)}, 2, {v(LANE)}")
a(f"v_lshlrev_b32 {v(vL16)}, 4, {v(LANE)}")
a(f"v_add_u32 {v(vL4)}, {L_MISC}, {v(vL4)}")
a(f"v_add_u32 {v(vL16)}, {L_MISC}, {v(vL16)}")
a(f"v_mov_b32 {v(vBIG)}, 0xdddd")
a(f"s_mul_i32 s56, {s(sKH)}, 0xc000")
if OPT["rot"]:
    a(f"s_lshl_b32 s57, {s(sGQ)}, 12")
    a("s_add_u32 s56, s56, s57")
xc_addrs(vXA, vXB, 56, 150, 151, LANE)
for t in range(3):
    for i in range(1, 4):
        a(f"v_mov_b32 {v(AF(1, t) + i)}, 0")
for i in range(0, 4):
    a(f"v_mov_b32 {v(BF(1, 0) + i)}, 0")
a("s_barrier")
a(f"s_lshl_b32 s56, {s(sU)}, 12")
a(f"v_add_u32 v150, s56, {v(vL16)}")
for q in range(3):
    a(f"ds_write_b128 v150, {v(BF(1, 0), 4)} offset:{P0 + 16384 + 1024 * q}")
a(f"s_cmp_eq_u32 {s(sU)}, 3")
a("s_cbranch_scc1 L_G_z")
a(f"ds_write_b128 v150, {v(BF(1, 0), 4)} offset:{P0 + 16384 + 3072}")
a.label("L_G_z")
srd(SRD_D, P_WQ, 512 * 1024)
row128(149, 150, 1024, LANE)
if OPT["rot"]:
    a(f"s_add_u32 s56, {s(sU)}, {s(sGQ)}")
    a("s_and_b32 s56, s56, 3")
else:
    a(f"s_mov_b32 s56, {s(sU)}")
a("s_lshl_b32 s57, s56, 14")
a(f"s_add_u32 m0, s57, {L_W}")
a("s_lshl_b32 s56, s56, 17")
a(f"s_lshl_b32 s57, {s(sJ)}, 7")
a("s_add_u32 s56, s56, s57")
a("s_waitcnt vmcnt(0)")
arrive(C_WKV)
for i in range(16):
    a(f"buffer_load_dwordx4 v149, {s(SRD_D, 4)}, s56 offen lds")
    if i < 15:
        a("s_add_u32 m0, m0, 0x400")
        a("s_add_u32 s56, s56, 0x2000")


def w1_dma(t, nt):
    for k in range(nt):
        a(f"s_add_u32 m0, {s(sRING)}, {(t % 4) * 3072 + k * 1024}")
        if k == nt - 1:
            a(f"s_add_u32 s57, {s(sW1)}, {16 * 2752}")
        a.vmem(f"buffer_load_dwordx4 {v(vDMA + k)}, {s(SRD_A, 4)}, {s(sW1)} offen lds", ("w1", t))
    if OPT["rot"] and t in (3, 7, 11):
        a(f"s_cmp_eq_u32 {s(sGQ)}, {3 - t // 4}")
        a(f"s_cselect_b32 s58, {256 * 2752}, 0")
        a(f"s_sub_u32 {s(sW1)}, s57, s58")
    else:
        a(f"s_mov_b32 {s(sW1)}, s57")


def ffn1(nt):
    a.vm_reset()
    a.lg_reset()
    if nt == 3:
        for k in range(3):
            a(f"v_add_u32 v150, {64 * k}, {v(LANE)}")
            a("v_mul_u32_u24 v151, 43691, v150")
            a("v_lshrrev_b32 v151, 19, v151")
            a(f"v_mul_u32_u24 {v(vDMA + k)}, {2752 - 192}, v151")
            a(f"v_lshl_add_u32 {v(vDMA + k)}, v150, 4, {v(vDMA + k)}")
        a(f"v_lshrrev_b32 v150, 5, {v(LANE)}")
        a(f"v_bfe_u32 v151, {v(LANE)}, 2, 2")
        a("v_lshl_add_u32 v150, v150, 3, v151")
        a(f"v_mul_u32_u24 {v(vTR)}, 192, v150")
        a(f"v_bfe_u32 v151, {v(LANE)}, 4, 1")
        a(f"v_lshl_add_u32 {v(vTR)}, v151, 5, {v(vTR)}")
        a(f"v_and_b32 v151, 3, {v(LANE)}")
        a(f"v_lshl_add_u32 {v(vTR)}, v151, 3, {v(vTR)}")
        a(f"v_add_u32 {v(vTR)}, {s(sRING)}, {v(vTR)}")
    else:
        row128(vDMA, 150, 2752, LANE)
        a(f"v_add_u32 {v(vDMA + 1)}, {8 * 2752}, {v(vDMA)}")
        tr_swz(vTR, 150, 151, 1024, LANE)
        a(f"v_xor_b32 {v(vTR + 1)}, 64, {v(vTR)}")
        a(f"v_add_u32 {v(vTR)}, {s(sRING)}, {v(vTR)}")
        a(f"v_add_u32 {v(vTR + 1)}, {s(sRING)}, {v(vTR + 1)}")
    a(f"s_lshl_b32 s56, {s(sKH)}, 7")
    a(f"v_and_b32 v150, 31, {v(LANE)}")
    a("v_lshl_add_u32 v150, v150, 2, s56")
    a(f"v_add_u32 v150, {L_MISC}, v150")
    a("s_waitcnt vmcnt(0) lgkmcnt(0)")
    a("s_barrier")
    if OPT["gate"]:
        spin_lds(C_KVL, 8, 154)
    else:
        spin_lds(C_QL, 4, 154)
    a(f"s_setprio {OPT['gp_f1']}")
    for t in range(4):
        w1_dma(t, nt)
    stamp(1)
    a.lds(f"ds_read_b32 v153, {v(vL4)} offset:{C_TAG}", "den")
    a.lds(f"ds_read_b32 {v(BF(1, 0))}, v150 offset:{M_DEN}", "den")
    a.lds(f"ds_read_b32 v152, v150 offset:{M_RSTD}", "den")

    def reads(t):
        st = t % 2
        out = []
        for k in range(nt):
            for f in range(2):
                if nt == 3:
                    ad, off = vTR, (t % 4) * 3072 + 768 * f + 64 * k
                else:
                    ad, off = vTR + k, (t % 4) * 3072 + 512 * f
                out.append((f"ds_read_b64_tr_b16 {v(AF(st, k) + 2 * f, 2)}, {v(ad)} offset:{off}", ("f", t)))
        out.insert(2, (f"ds_read_b128 {v(BF(st, 0), 4)}, {v(vXA + t % 4)} offset:{1024 * t}", ("f", t)))
        out.insert(3, (f"ds_read_b128 {v(BF(st, 1), 4)}, {v(vXB + t % 4)} offset:{1024 * t}", ("f", t)))
        return out

    a.wait_lg("den")
    a(f"v_readfirstlane_b32 {s(sTAG)}, v153")
    for k in range(nt):
        mfma32(32 * k, AF(1, k), BF(1, 0), None)
    a.wait_vm(("w1", 0))
    for x in reads(0):
        a.lds(*x)
    for t in range(16):
        a.wait_lg(("f", t))
        if t + 4 < 16:
            w1_dma(t + 4, nt)
        rd = []
        if t + 1 < 16:
            if OPT["rot"] and t in (3, 7, 11):
                a(f"s_cmp_eq_u32 {s(sGQ)}, {3 - t // 4}")
                a("s_cselect_b32 s58, 0x4000, 0")
                for i in range(8):
                    a(f"v_subrev_u32 {v(vXA + i)}, s58, {v(vXA + i)}")
            a.wait_vm(("w1", t + 1))
            rd = reads(t + 1)
        st = t % 2
        pers = [2, 1, 1, 2, 1, 1] if nt == 3 else [2, 1, 2, 1]
        for k in range(nt):
            for sl in range(2):
                per = pers[2 * k + sl]
                for x in rd[:per]:
                    a.lds(*x)
                if rd[:per] and OPT["space"]:
                    a("s_waitcnt lgkmcnt(0)")
                rd = rd[per:]
                mfma32(32 * k + 16 * sl, AF(st, k), BF(st, sl), None if (t == 0 and sl == 1) else 32 * k + 16 * sl)


a(f"s_cmp_eq_u32 {s(sN3)}, 1")
a("s_cbranch_scc0 L_ffn1_2")
ffn1(3)
a("s_branch L_ffn1_done")
a.label("L_ffn1_2")
ffn1(2)
a.label("L_ffn1_done")
a(f"s_setprio {OPT['gp_mish']}")
stamp(2)
a.lg_reset()
a.vm_reset()
a(f"v_subrev_u32 v150, {L_MISC}, {v(vL16)}")
a(f"v_add_u32 v151, {s(sRING)}, v150")
for t in range(3):
    for q in range(4):
        a.lds(f"ds_write_b128 v151, {v(32 * t + 16 + 4 * q, 4)} offset:{4096 * t + 1024 * q}")
a(f"s_xor_b32 s56, {s(sU)}, 1")
a("s_mul_i32 s56, s56, 12288")
a(f"s_add_u32 s56, s56, {L_GR}")
a("v_add_u32 v151, s56, v150")
a.wait_lg_all()
arrive(C_G1)
spin_lds(C_G1, 4, 154)
for t in range(3):
    for q in range(4):
        a.lds(f"ds_read_b128 {v(32 * t + 16 + 4 * q, 4)}, v151 offset:{4096 * t + 1024 * q}", ("x", t))
a(f"v_mul_f32 v154, {fbits(LOG2E)}, v152")
a(f"s_lshl_b32 s56, {s(sG)}, 1")
a(f"s_add_u32 s56, s56, {s(sKH)}")
a("s_mul_i32 s56, s56, 86")
a(f"s_lshl_b32 s57, {s(sNT)}, 1")
a("s_add_u32 s56, s56, s57")
a("s_lshl_b32 s56, s56, 10")
a(f"s_add_u32 s56, s56, {WS_ACT}")
for t in range(3):
    if t == 2:
        a(f"s_cmp_eq_u32 {s(sN3)}, 1")
        a("s_cbranch_scc0 L_mish_done")
    a.wait_lg(("x", t))
    H, U, W_ = 32 * t, 32 * t + 16, 96
    for i in range(8):
        a(f"v_pk_add_f32 {v(H + 2 * i, 2)}, {v(H + 2 * i, 2)}, {v(U + 2 * i, 2)}")
    for i in range(8):
        a(f"v_pk_mul_f32 {v(U + 2 * i, 2)}, {v(H + 2 * i, 2)}, v[154:155] op_sel_hi:[1,0]")
    for i in range(16):
        a(f"v_exp_f32 {v(U + i)}, {v(U + i)}")
    for i in range(8):
        a(f"v_pk_mul_f32 {v(H + 2 * i, 2)}, {v(H + 2 * i, 2)}, v[152:153] op_sel_hi:[1,0]")
    for i in range(8):
        a(f"v_pk_add_f32 {v(W_ + 2 * i, 2)}, {v(U + 2 * i, 2)}, 2.0 op_sel_hi:[1,0]")
    for i in range(8):
        a(f"v_pk_fma_f32 {v(U + 2 * i, 2)}, {v(U + 2 * i, 2)}, {v(W_ + 2 * i, 2)}, 2.0 op_sel_hi:[1,1,0]")
    for i in range(16):
        a(f"v_rcp_f32 {v(U + i)}, {v(U + i)}")
    for i in range(8):
        a(f"v_pk_fma_f32 {v(U + 2 * i, 2)}, {v(U + 2 * i, 2)}, -2.0, 1.0 op_sel_hi:[1,0,0]")
    for i in range(8):
        a(f"v_pk_mul_f32 {v(H + 2 * i, 2)}, {v(H + 2 * i, 2)}, {v(U + 2 * i, 2)}")
    for i in range(8):
        a(f"v_cvt_pk_bf16_f32 {v(U + i)}, {v(H + 2 * i)}, {v(H + 2 * i + 1)}")
    soff = "s56" if t < 2 else "s57"
    if t == 2:
        a("s_add_u32 s57, s56, 0x1000")
    for u in range(2):
        a.vmem(f"buffer_store_dwordx4 {v(U + 4 * u, 4)}, v150, {s(SRD_WS, 4)}, {soff} offen offset:{(2048 * t + 1024 * u) % 4096} sc1")
a.label("L_mish_done")
stamp(3)
vTA, vDM2, vRES = 128, 130, 132
srd(SRD_A, P_W2, 1376 * 1024)
srd(SRD_B, P_X, 2048 * 1024)
srd(SRD_C, P_WO, 512 * 1024)
srd(SRD_D, P_OUT, 2048 * 1024)
sC, sR = 71, 72
a(f"s_and_b32 {s(sC)}, {s(sU)}, 1")
a(f"s_lshr_b32 {s(sR)}, {s(sU)}, 1")
row128(vDM2, 156, 1024, LANE)
tr_swz(160, 156, 157, 512, LANE)
a(f"s_lshl_b32 s57, {s(sC)}, 6")
a("v_xor_b32 v160, s57, v160")
a(f"s_lshl_b32 {s(sRING)}, {s(sU)}, 14")
a(f"v_add_u32 {v(vTA)}, {s(sRING)}, v160")
a(f"v_xor_b32 {v(vTA + 1)}, 64, {v(vTA)}")
a(f"v_and_b32 v156, 31, {v(LANE)}")
a(f"v_lshrrev_b32 v157, 5, {v(LANE)}")
a("v_lshlrev_b32 v156, 10, v156")
a("v_lshl_add_u32 v161, v157, 4, v156")
a(f"v_lshlrev_b32 v163, 7, {v(LANE)}")
sOUT = 73
a(f"s_lshl_b32 {s(sOUT)}, {s(sG)}, 16")
a(f"s_lshl_b32 s57, {s(sR)}, 15")
a(f"s_add_u32 {s(sOUT)}, {s(sOUT)}, s57")
a(f"s_lshl_b32 s57, {s(sJ)}, 7")
a(f"s_add_u32 {s(sOUT)}, {s(sOUT)}, s57")
a(f"s_lshl_b32 s57, {s(sC)}, 6")
a(f"s_add_u32 {s(sOUT)}, {s(sOUT)}, s57")
a.wait_vm_all()
arrive_rtn(C_ACT, 157, 58)
a("s_cmp_eq_u32 s58, 3")
a("s_cbranch_scc0 L_G_noact")
set_flag(0, 157)
a.label("L_G_noact")
for k in range(2):
    a(f"buffer_load_dwordx4 {v(vRES + 4 * k, 4)}, v161, {s(SRD_B, 4)}, {s(sOUT)} offen offset:{32 * k}")
NS = 22
sIW, sIA, sB0, sB1, sLO = 70, 63, 74, 75, 62
if OPT["rot"]:
    a(f"s_mul_i32 s57, {s(sJ)}, 3")
    a(f"s_mul_i32 s58, {s(sGQ)}, 5")
    a("s_add_u32 s57, s57, s58")
    a(f"s_cmp_ge_u32 s57, {NS}")
    a(f"s_cselect_b32 s58, {NS}, 0")
    a(f"s_sub_u32 {s(sIW)}, s57, s58")
else:
    a(f"s_mov_b32 {s(sIW)}, 0")
a(f"s_mov_b32 {s(sIA)}, {s(sIW)}")
a(f"s_mul_i32 {s(sLO)}, {s(sU)}, {NS}")
a(f"s_lshl_b32 s61, {s(sJ)}, 7")


def advance(si):
    a(f"s_add_u32 {s(si)}, {s(si)}, 1")
    a(f"s_cmp_eq_u32 {s(si)}, {NS}")
    a(f"s_cselect_b32 {s(si)}, 0, {s(si)}")


def w2_dma(t):
    a(f"s_add_u32 s56, {s(sIW)}, {s(sLO)}")
    a("s_lshl_b32 s56, s56, 14")
    a(f"s_add_u32 m0, {s(sRING)}, {(t % 8) * 2048}")
    a("s_add_u32 s56, s56, s61")
    a.vmem(f"buffer_load_dwordx4 {v(vDM2)}, {s(SRD_A, 4)}, s56 offen lds", ("w2", t))
    a("s_add_u32 m0, m0, 0x400")
    a("s_add_u32 s56, s56, 0x2000")
    a.vmem(f"buffer_load_dwordx4 {v(vDM2)}, {s(SRD_A, 4)}, s56 offen lds", ("w2", t))
    advance(sIW)


for t in range(8):
    w2_dma(t)
a(f"s_lshl_b32 s57, {s(sG)}, 1")
a(f"s_add_u32 s58, s57, {s(sR)}")
a(f"s_mul_i32 {s(sB0)}, s58, {86 * 1024}")
a("s_xor_b32 s58, s58, 1")
a(f"s_mul_i32 {s(sB1)}, s58, {86 * 1024}")
a(f"s_add_u32 {s(sB0)}, {s(sB0)}, {WS_ACT}")
a(f"s_add_u32 {s(sB1)}, {s(sB1)}, {WS_ACT}")
sFL = 60
a(f"s_lshl_b32 {s(sFL)}, {s(sG)}, 10")
a(f"s_add_u32 {s(sFL)}, {s(sFL)}, {WS_FLAG}")
poll_flags(s(sFL), 8, 157, 163)
stamp(4)
a.vm_reset()
a.lg_reset()
BQ = lambda t, sl: 64 + 8 * (t % 6) + 4 * sl
AF2 = lambda st, k: 112 + 8 * st + 4 * k


def act_loads(t):
    a(f"s_add_u32 s56, {s(sIA)}, {s(sLO)}")
    a("s_lshl_b32 s57, s56, 10")
    a("s_cmp_lt_u32 s56, 86")
    a("s_cselect_b32 s57, s57, 0x10000000")
    a(f"s_add_u32 s56, s57, {s(sB0)}")
    a(f"s_add_u32 s57, s57, {s(sB1)}")
    for sl in range(2):
        a.vmem(f"buffer_load_dwordx4 {v(BQ(t, sl), 4)}, v150, {s(SRD_WS, 4)}, s{56 + sl} offen sc1", ("act", t))
    advance(sIA)


def w2_reads(t):
    return [(f"ds_read_b64_tr_b16 {v(AF2(t % 2, k) + 2 * f, 2)}, {v(vTA + k)} offset:{(t % 8) * 2048 + 1024 * f}", ("a2", t))
            for k in range(2) for f in range(2)]


for t in range(6):
    act_loads(t)
for x in w2_reads(0):
    a.lds(*x)
for k in (0, 4):
    a(f"v_permlane32_swap_b32 {v(vRES + k)}, {v(vRES + k + 2)}")
    a(f"v_permlane32_swap_b32 {v(vRES + k + 1)}, {v(vRES + k + 3)}")
for i in range(8):
    a(f"v_lshlrev_b32 {v(2 * i)}, 16, {v(vRES + i)}")
    a(f"v_and_b32 {v(2 * i + 1)}, 0xffff0000, {v(vRES + i)}")
a(f"s_setprio {OPT['gp_f2']}")
for t in range(NS):
    a.wait_lg(("a2", t))
    if t + 8 < NS:
        w2_dma(t + 8)
    a.wait_vm(("act", t), ("w2", t + 1))
    rd = w2_reads(t + 1) if t + 1 < NS else []
    for sl in range(4):
        if rd:
            a.lds(*rd[sl])
            if OPT["space"]:
                a("s_waitcnt lgkmcnt(0)")
        mfma32(16 * sl, AF2(t % 2, sl & 1), BQ(t, sl >> 1), None if (t == 0 and sl > 0) else 16 * sl)
    if t + 6 < NS:
        act_loads(t + 6)
a(f"s_setprio {OPT['gp_tail']}")
stamp(5)
for sl in range(1, 4):
    a(f"s_xor_b32 s56, {s(sU)}, {sl}")
    a("s_mul_i32 s56, s56, 12288")
    a(f"s_add_u32 s56, s56, {L_GR + 4096 * (sl - 1)}")
    a(f"v_add_u32 v{151 + sl}, s56, v150")
for sl in range(1, 4):
    for q in range(4):
        a.lds(f"ds_write_b128 v{151 + sl}, {v(16 * sl + 4 * q, 4)} offset:{1024 * q}")
a(f"s_mul_i32 s56, {s(sU)}, 12288")
a(f"s_add_u32 s56, s56, {L_GR}")
a("v_add_u32 v151, s56, v150")
a.wait_lg_all()
arrive(C_G2)
spin_lds(C_G2, 4, 157)
a(f"s_lshl_b32 s56, {s(sU)}, 17")
a(f"s_lshl_b32 s57, {s(sJ)}, 7")
a("s_add_u32 s56, s56, s57")
a(f"s_mov_b32 m0, {s(sRING)}")
for i in range(16):
    a.vmem(f"buffer_load_dwordx4 {v(vDM2)}, {s(SRD_C, 4)}, s56 offen lds")
    if i < 15:
        a("s_add_u32 s56, s56, 0x2000")
        a("s_add_u32 m0, m0, 0x400")
for sl in range(1, 4):
    for q in range(4):
        a.lds(f"ds_read_b128 {v(16 * sl + 4 * q, 4)}, v151 offset:{4096 * (sl - 1) + 1024 * q}", ("y", sl))
for sl in range(1, 4):
    a.wait_lg(("y", sl))
    for i in range(8):
        a(f"v_pk_add_f32 {v(2 * i, 2)}, {v(2 * i, 2)}, {v(16 * sl + 2 * i, 2)}")
a.wait_vm_all()
arrive(C_WO)
spin_lds(C_WO, 4, 157)
stamp(6)
a.lg_reset()
AF3 = lambda h: 144 + 4 * (h % 3)


def wo_reads(h):
    for f in range(2):
        a.lds(f"ds_read_b64_tr_b16 {v(AF3(h) + 2 * f, 2)}, v160 offset:{2048 * h + 1024 * f}", ("wo", h))


a(f"s_lshl_b32 s57, {s(sR)}, 15")
a(f"s_add_u32 s57, s57, {s(sFL)}")
a("s_add_u32 s57, s57, 0x8000")
a(f"s_lshl_b32 s58, {s(sG)}, 16")
a(f"s_lshl_b32 s59, {s(sR)}, 15")
a("s_add_u32 s58, s58, s59")
a(f"s_add_u32 s58, s58, {WS_O}")
a(f"v_mov_b32 v162, v150")
poll_flags("s57", 8, 157, 163)
stamp(7)
a.vm_reset()
for h in range(32):
    a.vmem(f"buffer_load_dwordx4 {v(16 + 4 * h, 4)}, v162, {s(SRD_WS, 4)}, s58 offen offset:{1024 * (h % 4)} sc1", ("o", h))
    if h % 4 == 3 and h < 31:
        a("s_add_u32 s58, s58, 0x1000")
wo_reads(0)
wo_reads(1)
for h in range(32):
    if h + 2 < 32:
        wo_reads(h + 2)
    a.wait_lg(("wo", h))
    a.wait_vm(("o", h))
    mfma32(0, AF3(h), 16 + 4 * h, 0)
for i in range(8):
    a(f"v_cvt_pk_bf16_f32 {v(16 + i)}, {v(2 * i)}, {v(2 * i + 1)}")
for k in (0, 4):
    a(f"v_permlane32_swap_b32 {v(16 + k)}, {v(18 + k)}")
    a(f"v_permlane32_swap_b32 {v(17 + k)}, {v(19 + k)}")
for k in range(2):
    a(f"buffer_store_dwordx4 {v(16 + 4 * k, 4)}, v161, {s(SRD_D, 4)}, {s(sOUT)} offen offset:{32 * k}")
stamp(8)
stamps_out(9)
a.label("L_end")
a("s_endpgm")

body = hazard_pass(a.lines, verbose=True)
HEAD = open(os.path.join(os.path.dirname(os.path.abspath(__file__)), "..", "cdna_kernels", NAME + ".s.ref")).read().split("\n")
hdr = [l for l in HEAD if l.startswith(";") and "@launch" not in l and "; v1" not in l]
hdr = hdr[:13]
out = "\n".join(hdr) + "\n"
out += f"; @launch grid=(256,1,1) block=(768,1,1) lds={L_END}\n"
out += f""".amdgcn_target "amdgcn-amd-amdhsa--gfx950"
.text
.globl {NAME}_kernel
.p2align 8
.type {NAME}_kernel,@function
{NAME}_kernel:
"""
out += render(body)
out += f""".section .rodata,"a"
.p2align 6
.amdhsa_kernel {NAME}_kernel
  .amdhsa_next_free_vgpr 168
  .amdhsa_next_free_sgpr 102
  .amdhsa_accum_offset 168
  .amdhsa_group_segment_fixed_size 0
  .amdhsa_kernarg_size 96
  .amdhsa_user_sgpr_count 2
  .amdhsa_user_sgpr_kernarg_segment_ptr 1
  .amdhsa_system_sgpr_workgroup_id_x 1
.end_amdhsa_kernel
"""
open(sys.argv[1], "w").write(out)
print("lines", len(body), "LDS", L_END)
```

```python
import sys, os
sys.path.insert(0, os.path.dirname(os.path.abspath(__file__)))
from asmdsl import Asm, v, s, hazard_pass, render

NAME = "parallel_sum__grouped_kv_mqa__dense_activation_mish__prompt"

OPT = dict(stamps=False, prefetch_code=True, force_fallback=False, gp_f1=0, gp_mish=3, gp_f2=0, gp_tail=3, psleep=4, rot=1, wq_early=8, kvflag_first=1, w1_early=0, w1_mid=0, gate=4, space=0, w1pre=0, xnt=1, w1l2=0, w2l2=1, gfirst=1, pvpos=15, rswap=1, wqe=1, gst=0, zlate=0, sent=1, osleep=2, ost=0, kvst=0, kvpre=4, fair=2, fin0g=1, gskip=0, zmfma=0, hiwait=1, qtst=0)
for a_ in sys.argv[2:]:
    k_, v_ = a_.split("=")
    OPT[k_] = int(v_)

WS_K = 0x0
WS_V = 0x10000
WS_KVF = 0x20000
WS_E = 0x24000
WS_FLAG = 0x28000
WS_O = 0x40000
WS_ACT = 0x240000
WS_STAMP = 0x800000
WS_SIZE = 0x900000
L_XC = 0
L_MISC = 65536
L_P = L_MISC + 1024
L_W = L_P + 31744
L_GR = L_W + 16384
L_END = L_W + 65536
M_RSTD, M_DEN, M_CNT = 0, 256, 512
C_KV, C_QL, C_Q2, C_KVSEEN, C_MQ, C_MK, C_MKALL, C_G1, C_ACT, C_G2, C_WO, C_O0, C_O1, C_F0, C_F1, C_MX, C_WKV, C_TAG, C_KVL, C_XC = \
    [M_CNT + 4 * i for i in range(20)]
P0 = L_P - L_MISC
QF = P0
MROW = P0 + 8192
OSUM = P0 + 9216

LOG2E = 1.4426950408889634
import struct
def fbits(x):
    return "0x%08x" % struct.unpack("<I", struct.pack("<f", x))[0]

P_X, P_WQ, P_WK, P_WV, P_WO, P_W1, P_B1, P_W2, P_OUT, P_DBG, P_WS = 8, 10, 12, 14, 16, 20, 22, 24, 26, 28, 30
sW, sG, sJ = 3, 4, 5
SRD_A, SRD_B, SRD_C, SRD_D, SRD_WS, SRD_DBG = 32, 36, 40, 44, 48, 52
sT = 56
sSPIN, sSP2 = 76, 77
sONES = 78
sTAG, sGQ = 6, 7
sSTAMP = 80
vBIG, vL4, vL16, vZ = 164, 165, 166, 167

a = Asm()
nstamp = {}


def srd(dst, ptr, size):
    a(f"s_mov_b32 {s(dst)}, {s(ptr)}")
    a(f"s_mov_b32 {s(dst + 1)}, {s(ptr + 1)}")
    a(f"s_mov_b32 {s(dst + 2)}, {size}")
    a(f"s_mov_b32 {s(dst + 3)}, 0x20000")


def stamp(i):
    if not OPT["stamps"]:
        return
    a(f"{'s_memtime' if OPT['stamps'] == 2 else 's_memrealtime'} {s(sSTAMP + 2 * i, 2)}")
    a.wait_lg_all()


def stamps_out(n):
    if not OPT["stamps"]:
        return
    a("s_waitcnt vmcnt(0) lgkmcnt(0)")
    a(f"s_mul_i32 s56, s2, 12")
    a(f"s_add_u32 s56, s56, {s(sW)}")
    a(f"s_lshl_b32 s56, s56, 6")
    a(f"s_add_u32 s56, s56, {WS_STAMP}")
    a("s_mov_b64 exec, 1")
    for i in range(n):
        a(f"v_mov_b32 v0, {s(sSTAMP + 2 * i)}")
        a(f"buffer_store_dword v0, off, {s(SRD_WS, 4)}, s56 offset:{4 * i}")
    a("s_waitcnt vmcnt(0)")


def arrive(off):
    a("s_mov_b64 exec, 1")
    a.lds(f"ds_inc_u32 {v(vL4)}, {v(vBIG)} offset:{off}")
    a("s_mov_b64 exec, -1")


def arrive_rtn(off, tmp, sdst):
    a("s_mov_b64 exec, 1")
    a.lds(f"ds_inc_rtn_u32 {v(tmp)}, {v(vL4)}, {v(vBIG)} offset:{off}")
    a("s_mov_b64 exec, -1")
    a.wait_lg_all()
    a(f"v_readfirstlane_b32 {s(sdst)}, {v(tmp)}")


def spin_lds(off, n, tmp, sleep=1):
    lo, done = a.newlabel("spin"), a.newlabel("spun")
    a(f"s_mov_b32 {s(sSPIN)}, 0x40000")
    a.label(lo)
    a(f"ds_read_b32 {v(tmp)}, {v(vL4)} offset:{off}")
    a.wait_lg_all()
    a(f"v_readfirstlane_b32 {s(sSP2)}, {v(tmp)}")
    a(f"s_cmp_ge_u32 {s(sSP2)}, {n}")
    a(f"s_cbranch_scc1 {done}")
    if sleep:
        a(f"s_sleep {sleep}")
    a(f"s_sub_u32 {s(sSPIN)}, {s(sSPIN)}, 1")
    a(f"s_cbranch_scc0 {lo}")
    a.label(done)


def poll_flags(soff, nlanes, tmp, addr, wide=False, restore=True):
    lo, done = a.newlabel("poll"), a.newlabel("polled")
    a(f"s_mov_b32 {s(sSPIN)}, 0x8000")
    a(f"s_mov_b32 exec_lo, {hex((1 << nlanes) - 1)}")
    a("s_mov_b32 exec_hi, 0")
    a.label(lo)
    if wide:
        a(f"buffer_load_dwordx2 {v(tmp, 2)}, {v(addr)}, {s(SRD_WS, 4)}, {soff} offen sc1")
    else:
        a(f"buffer_load_dword {v(tmp)}, {v(addr)}, {s(SRD_WS, 4)}, {soff} offen sc1")
    a.wait_vm_all()
    a(f"v_cmp_eq_u32 vcc, {s(sTAG)}, {v(tmp)}")
    a(f"s_cmp_eq_u64 vcc, exec")
    a(f"s_cbranch_scc1 {done}")
    a(f"s_sleep {OPT['psleep']}")
    a(f"s_sub_u32 {s(sSPIN)}, {s(sSPIN)}, 1")
    a(f"s_cbranch_scc0 {lo}")
    a.label(done)
    if restore:
        a("s_mov_b64 exec, -1")


def set_flag(k, tmp):
    a(f"s_lshl_b32 s56, {s(sG)}, 10")
    a(f"s_lshl_b32 s57, {s(sJ)}, 7")
    a("s_add_u32 s56, s56, s57")
    a(f"s_add_u32 s56, s56, {WS_FLAG + 32768 * k}")
    a("s_mov_b64 exec, 1")
    a(f"v_mov_b32 {v(tmp)}, {s(sTAG)}")
    a(f"buffer_store_dword {v(tmp)}, off, {s(SRD_WS, 4)}, s56 sc1")
    a("s_mov_b64 exec, -1")


def tr_swz(dst, t1, t2, hstride, lane):
    a(f"v_lshrrev_b32 {v(t1)}, 5, {v(lane)}")
    a(f"v_mul_u32_u24 {v(dst)}, {hstride}, {v(t1)}")
    a(f"v_bfe_u32 {v(t1)}, {v(lane)}, 2, 2")
    a(f"v_lshl_add_u32 {v(dst)}, {v(t1)}, 7, {v(dst)}")
    a(f"v_bfe_u32 {v(t1)}, {v(lane)}, 3, 1")
    a(f"v_lshl_add_u32 {v(dst)}, {v(t1)}, 6, {v(dst)}")
    a(f"v_bfe_u32 {v(t1)}, {v(lane)}, 4, 1")
    a(f"v_lshl_add_u32 {v(dst)}, {v(t1)}, 5, {v(dst)}")
    a(f"v_and_b32 {v(t1)}, 3, {v(lane)}")
    a(f"v_lshl_add_u32 {v(dst)}, {v(t1)}, 3, {v(dst)}")


def row128(dst, t1, stride, lane):
    a(f"v_lshrrev_b32 {v(t1)}, 3, {v(lane)}")
    a(f"v_mul_u32_u24 {v(dst)}, {stride}, {v(t1)}")
    a(f"v_bfe_u32 {v(t1)}, {v(lane)}, 4, 1")
    a(f"v_lshlrev_b32 {v(t1)}, 2, {v(t1)}")
    a(f"v_xor_b32 {v(t1)}, {v(t1)}, {v(lane)}")
    a(f"v_and_b32 {v(t1)}, 7, {v(t1)}")
    a(f"v_lshl_add_u32 {v(dst)}, {v(t1)}, 4, {v(dst)}")


def l2_prefetch(srdreg, per_cu, tmp, dst):
    per_wave = per_cu // 4
    a("s_lshr_b32 s56, s2, 3")
    a(f"s_mul_i32 s56, s56, {per_cu}")
    a(f"s_mul_i32 s57, {s(sU)}, {per_wave}")
    a("s_add_u32 s56, s56, s57")
    a(f"v_lshlrev_b32 {v(tmp)}, 7, {v(LANE)}")
    n = per_wave // 128
    while n > 0:
        if n < 64:
            a(f"s_mov_b32 exec_lo, {hex((1 << min(n, 32)) - 1)}")
            a(f"s_mov_b32 exec_hi, {hex((1 << max(n - 32, 0)) - 1)}")
        a.vmem(f"buffer_load_dword {v(dst)}, {v(tmp)}, {s(srdreg, 4)}, s56 offen")
        n -= 64
        if n > 0:
            a("s_add_u32 s56, s56, 0x2000")
    a("s_mov_b64 exec, -1")


def mfma32(d, A, B, C=None):
    c = "0" if C is None else v(C, 16)
    a(f"v_mfma_f32_32x32x16_bf16 {v(d, 16)}, {v(A, 4)}, {v(B, 4)}, {c}")


def tr_lane(dst, t1, t2, hstride, lane):
    a(f"v_lshrrev_b32 {v(t1)}, 5, {v(lane)}")
    a(f"v_mul_u32_u24 {v(dst)}, {hstride}, {v(t1)}")
    a(f"v_bfe_u32 {v(t1)}, {v(lane)}, 2, 2")
    a(f"v_lshl_add_u32 {v(dst)}, {v(t1)}, 6, {v(dst)}")
    a(f"v_bfe_u32 {v(t1)}, {v(lane)}, 4, 1")
    a(f"v_lshl_add_u32 {v(dst)}, {v(t1)}, 5, {v(dst)}")
    a(f"v_and_b32 {v(t1)}, 3, {v(lane)}")
    a(f"v_lshl_add_u32 {v(dst)}, {v(t1)}, 3, {v(dst)}")


def xc_addrs(xa, xb, sbase, t1, t2, lane):
    a(f"v_lshrrev_b32 {v(t1)}, 5, {v(lane)}")
    a(f"v_and_b32 {v(t2)}, 31, {v(lane)}")
    a(f"v_xor_b32 {v(t2)}, {v(t1)}, {v(t2)}")
    a(f"v_lshl_add_u32 {v(t1)}, {v(t1)}, 9, {s(sbase)}")
    for var in range(4):
        a(f"v_xor_b32 {v(xa + var)}, {2 * var}, {v(t2)}")
        a(f"v_lshl_add_u32 {v(xa + var)}, {v(xa + var)}, 4, {v(t1)}")
        a(f"v_xor_b32 {v(xb + var)}, 0x8000, {v(xa + var)}")


def finalize(r, u_sgpr, lane8=None, T=96):
    a.comment(f"finalize o, row tile {r}")
    spin_lds(C_O0 + 4 * r, 12 if (OPT["sent"] and (r == 1 or lane8 is None)) else 8, T, sleep=1 - r)
    a(f"s_mul_i32 s56, {s(u_sgpr)}, 4608")
    if lane8 is None:
        a(f"v_add_u32 {v(T + 12)}, s56, {v(vL4)}")
    else:
        a(f"s_add_u32 s56, s56, {L_MISC}")
        a(f"v_lshl_add_u32 {v(T + 12)}, {v(lane8)}, 3, s56")
    for i in (8, 0, 1, 2, 3, 4, 5, 6, 7):
        a.lds(f"ds_read_b64 {v(T + 32 + 2 * i, 2)}, {v(T + 12)} offset:{OSUM + r * 4 * 4608 + 512 * i}", ("fo", i))
    a(f"s_lshl_b32 s56, {s(sG)}, 16")
    a(f"s_lshl_b32 s57, {s(sJ)}, 12")
    a("s_add_u32 s56, s56, s57")
    a(f"s_lshl_b32 s57, {s(u_sgpr)}, 10")
    a("s_add_u32 s56, s56, s57")
    a(f"s_add_u32 s56, s56, {WS_O + r * 32768}")
    a(f"v_subrev_u32 {v(T + 13)}, {L_MISC}, {v(vL16)}")
    a.wait_lg(("fo", 8))
    a(f"v_cvt_f32_f64 {v(T + 8)}, {v(T + 48, 2)}")
    a(f"v_rcp_f32 {v(T + 8)}, {v(T + 8)}")
    a.wait_lg_all()
    for i in range(8):
        a(f"v_cvt_f32_f64 {v(T + i)}, {v(T + 32 + 2 * i, 2)}")
    for i in range(4):
        a(f"v_pk_mul_f32 {v(T + 2 * i, 2)}, {v(T + 2 * i, 2)}, {v(T + 8, 2)} op_sel_hi:[1,0]")
    for i in range(4):
        a(f"v_cvt_pk_bf16_f32 {v(T + 16 + i)}, {v(T + 2 * i)}, {v(T + 2 * i + 1)}")
    if OPT["sent"]:
        for i in range(4):
            a(f"v_min_u32 {v(T + 16 + i)}, -2, {v(T + 16 + i)}")
    a.vmem(f"buffer_store_dwordx4 {v(T + 16, 4)}, {v(T + 13)}, {s(SRD_WS, 4)}, s56 offen sc1")
    if OPT["sent"]:
        return
    a.wait_vm_all()
    arrive_rtn(C_F0 + 4 * r, T, 58)
    skip = a.newlabel("nofl")
    a("s_cmp_eq_u32 s58, 3")
    a(f"s_cbranch_scc0 {skip}")
    set_flag(1 + r, T)
    a.label(skip)


a.label("L_start")
a("s_cmp_ge_u32 s2, 256")
a("s_cbranch_scc1 L_end")
a("s_load_dwordx16 s[8:23], s[0:1], 0")
a("s_load_dwordx8 s[24:31], s[0:1], 64")
if OPT["stamps"]:
    a(f"{'s_memtime' if OPT['stamps'] == 2 else 's_memrealtime'} {s(sSTAMP, 2)}")
a("v_lshrrev_b32 v1, 6, v0")
a(f"v_and_b32 {v(vZ)}, 63, v0")
a(f"v_readfirstlane_b32 {s(sW)}, v1")
a("s_and_b32 s56, s2, 7")
a(f"s_bfe_u32 {s(sGQ)}, s2, 0x20003")
a(f"s_lshl_b32 {s(sG)}, s56, 2")
a(f"s_add_u32 {s(sG)}, {s(sG)}, {s(sGQ)}")
a(f"s_lshr_b32 {s(sJ)}, s2, 5")
LANE = vZ
a(f"s_mov_b32 s62, {WS_E}")
a(f"s_cmp_ge_u32 {s(sW)}, 8")
a("s_cbranch_scc1 L_G")

XNT = " nt" if OPT["xnt"] else ""
sRB = 64
a(f"s_lshl_b32 s56, {s(sJ)}, 2")
a(f"s_xor_b32 s56, s56, {s(sW)}")
a("s_and_b32 s56, s56, 4")
a(f"s_lshr_b32 s57, {s(sJ)}, 1")
a(f"s_add_u32 s57, s57, {s(sW)}")
a("s_and_b32 s57, s57, 3")
a(f"s_or_b32 {s(sRB)}, s56, s57")
a(f"v_lshrrev_b32 v160, 3, {v(LANE)}")
a(f"v_and_b32 v161, 7, {v(LANE)}")
a("v_lshlrev_b32 v162, 10, v160")
a("v_lshl_add_u32 v162, v161, 4, v162")
a(f"s_lshl_b32 s56, {s(sG)}, 16")
a(f"s_lshl_b32 s57, {s(sRB)}, 13")
a("s_add_u32 s56, s56, s57")
a(f"v_lshlrev_b32 {v(vL4)}, 2, {v(LANE)}")
a(f"v_add_u32 {v(vL4)}, {L_MISC}, {v(vL4)}")
a("v_mov_b32 v108, 0")
a("s_waitcnt lgkmcnt(0)")
srd(SRD_A, P_X, 2048 * 1024)
a(f"s_lshr_b32 s57, {s(sJ)}, 2")
a(f"s_lshr_b32 s58, {s(sW)}, 2")
a("s_or_b32 s63, s57, s58")
a("s_cbranch_scc1 L_A_nowkv")
a(f"s_cmp_lt_u32 {s(sJ)}, 2")
a(f"s_cselect_b32 {s(SRD_C)}, {s(P_WK)}, {s(P_WV)}")
a(f"s_cselect_b32 {s(SRD_C + 1)}, {s(P_WK + 1)}, {s(P_WV + 1)}")
a(f"s_mov_b32 {s(SRD_C + 2)}, 16384")
a(f"s_mov_b32 {s(SRD_C + 3)}, 0x20000")
a(f"v_bfe_u32 v96, {v(LANE)}, 3, 2")
a(f"v_lshrrev_b32 v97, 5, {v(LANE)}")
a("v_lshl_add_u32 v96, v96, 1, v97")
a("v_lshlrev_b32 v97, 4, v161")
a("v_lshl_add_u32 v96, v96, 7, v97")
a(f"s_lshl_b32 s57, {s(sW)}, 12")
a(f"s_add_u32 m0, s57, {L_P}")
a(f"s_lshr_b32 s58, {s(sW)}, 1")
a("s_lshl_b32 s58, s58, 13")
a(f"s_and_b32 s59, {s(sW)}, 1")
a("s_lshl_b32 s59, s59, 1")
if OPT["rot"]:
    a(f"s_add_u32 s59, s59, {s(sGQ)}")
for i in range(2):
    a("s_and_b32 s57, s59, 3")
    a("s_lshl_b32 s57, s57, 11")
    a("s_add_u32 s57, s57, s58")
    a(f"buffer_load_dwordx4 v96, {s(SRD_C, 4)}, s57 offen lds")
    a(f"buffer_load_dwordx4 v96, {s(SRD_C, 4)}, s57 offen offset:1024 lds")
    if i == 0:
        a("s_add_u32 m0, m0, 0x800")
        a("s_add_u32 s59, s59, 1")
a("s_branch L_A_first")
a.label("L_A_nowkv")
a(f"s_cmp_ge_u32 {s(sW)}, 4")
a("s_cbranch_scc0 L_A_first")
a(f"ds_write_b32 {v(vL4)}, v108 offset:{M_CNT}")
a("s_waitcnt lgkmcnt(0)")
a("s_barrier")
a.label("L_A_first")
for i in range(4):
    if OPT["rot"]:
        a(f"s_add_u32 s57, {s(sGQ)}, {i}")
        a("s_and_b32 s57, s57, 3")
        a("s_lshl_b32 s57, s57, 7")
        a(f"s_add_u32 s{68 + i}, s57, s56")
    else:
        a(f"s_add_u32 s{68 + i}, s56, {128 * i}")
    a(f"buffer_load_dwordx4 {v(4 * i, 4)}, v162, {s(SRD_A, 4)}, s{68 + i} offen{XNT}")
for i in range(4):
    a(f"buffer_load_dwordx4 {v(16 + 4 * i, 4)}, v162, {s(SRD_A, 4)}, s{68 + i} offen offset:512{XNT}")
srd(SRD_WS, P_WS, WS_SIZE)
a(f"s_cmp_ge_u32 {s(sW)}, 4")
a("s_cbranch_scc1 L_A_hi0")
a("s_setprio 2")
a(f"buffer_load_dword v110, off, {s(SRD_WS, 4)}, s62 sc1")
a("s_barrier")
a("s_branch L_A_setup")
a.label("L_A_hi0")
a("s_setprio 1")
if OPT["prefetch_code"]:
    a(f"s_cmp_eq_u32 {s(sW)}, 4")
    a("s_cbranch_scc0 L_A_setup")
    a("s_getpc_b64 s[60:61]")
    a.label("L_pcref")
    a("s_lshr_b32 s57, s2, 3")
    a("s_mul_i32 s57, s57, 1280")
    a(f"v_min_u32 v96, 9, {v(LANE)}")
    a("v_lshl_add_u32 v96, v96, 7, s57")
    a("v_min_u32 v96, L_end-L_pcref, v96")
    a("global_load_dword v111, v96, s[60:61]")
a.label("L_A_setup")
a(f"v_lshlrev_b32 {v(vL16)}, 4, {v(LANE)}")
a(f"v_add_u32 {v(vL16)}, {L_MISC}, {v(vL16)}")
a(f"v_mov_b32 {v(vBIG)}, 0xdddd")
a("v_mov_b32 v109, 0")
a(f"s_and_b32 s57, {s(sRB)}, 3")
a("s_lshl_b32 s57, s57, 3")
a("v_add_u32 v163, s57, v160")
a("v_xor_b32 v163, v163, v161")
a("v_lshlrev_b32 v163, 4, v163")
a("v_lshrrev_b32 v96, 1, v161")
a("v_lshl_add_u32 v163, v96, 10, v163")
a("v_and_b32 v96, 1, v161")
a("v_lshl_add_u32 v163, v96, 9, v163")
a(f"s_lshr_b32 s57, {s(sRB)}, 2")
a("s_lshl_b32 s57, s57, 15")
a("v_add_u32 v163, s57, v163")
a(f"s_lshl_b32 s57, {s(sRB)}, 5")
a(f"s_add_u32 s57, s57, {L_MISC}")
a("v_lshl_add_u32 v162, v160, 2, s57")
a("s_mov_b32 s60, 0x3f803f80")
a("s_mov_b32 s61, 0x00003f80")
for i in range(4):
    a(f"v_mov_b32 v{96 + i}, 0")
a(f"v_mov_b32 v119, {L_MISC}")
a(f"v_lshrrev_b32 v112, 4, {v(LANE)}")
a(f"s_and_b32 s59, {s(sRB)}, 3")
a("s_lshl_b32 s59, s59, 3")
a("v_add_u32 v114, s59, v161")
a("v_xor_b32 v114, v114, v112")
a("v_lshrrev_b32 v115, 1, v112")
a("v_and_b32 v116, 1, v112")
a("v_lshlrev_b32 v117, 10, v115")
a("v_lshl_add_u32 v117, v116, 9, v117")
a(f"s_lshr_b32 s59, {s(sRB)}, 2")
a("s_lshl_b32 s59, s59, 15")
a("v_add_u32 v117, s59, v117")
a("v_lshl_add_u32 v120, v114, 4, v117")
a("v_xor_b32 v114, 4, v114")
a("v_lshl_add_u32 v121, v114, 4, v117")
a(f"s_mov_b32 s59, {L_P}")
a(f"v_lshl_add_u32 v122, {v(LANE)}, 3, s59")
a(f"s_lshl_b32 s59, {s(sRB)}, 5")
a(f"s_add_u32 s59, s59, {L_MISC + M_RSTD}")
a(f"s_lshl_b32 s72, {s(sG)}, 11")
a(f"s_lshl_b32 s73, {s(sG)}, 2")
a(f"s_add_u32 s73, s73, {s(sJ)}")
a("s_lshl_b32 s73, s73, 7")
a(f"s_add_u32 s73, s73, {WS_KVF}")
a(f"s_cmp_lt_u32 {s(sJ)}, 2")
a("s_cbranch_scc0 L_A_sv")
a("v_lshl_add_u32 v117, v161, 2, s59")
a("v_lshlrev_b32 v118, 9, v116")
a("v_lshl_add_u32 v118, v161, 4, v118")
a("v_lshl_add_u32 v118, v115, 3, v118")
a(f"s_lshr_b32 s59, {s(sRB)}, 2")
a("s_lshl_b32 s59, s59, 10")
a("s_add_u32 s72, s72, s59")
a(f"s_and_b32 s59, {s(sRB)}, 3")
a("s_lshl_b32 s59, s59, 7")
a("s_add_u32 s72, s72, s59")
if WS_K:
    a(f"s_add_u32 s72, s72, {WS_K}")
a("s_branch L_A_sk")
a.label("L_A_sv")
a("v_lshl_add_u32 v117, v116, 4, s59")
a(f"v_and_b32 v118, 15, {v(LANE)}")
a("v_lshlrev_b32 v118, 4, v118")
a("v_lshl_add_u32 v118, v112, 3, v118")
a(f"s_lshl_b32 s59, {s(sRB)}, 8")
a("s_add_u32 s72, s72, s59")
a(f"s_add_u32 s72, s72, {WS_V}")
a.label("L_A_sk")
a("s_cmp_eq_u32 s63, 0")
a("s_cbranch_scc0 L_A_now")
a("s_waitcnt vmcnt(9)")
arrive(C_WKV)
spin_lds(C_WKV, 4, 115, sleep=0)
for st in range(16):
    for f in range(2):
        a(f"ds_read_b64_tr_b16 {v(32 + 4 * st + 2 * f, 2)}, v122 offset:{1024 * st + 512 * f}")
a.label("L_A_now")
a(f"s_cmp_ge_u32 {s(sW)}, 4")
a("s_cbranch_scc0 L_A_w1")
a("s_waitcnt vmcnt(0)")
a.label("L_A_w1")
a("s_waitcnt vmcnt(1)")
a("s_mov_b32 s62, 0x3f800000")
stamp(1)
for i in range(32):
    a(f"v_dot2c_f32_bf16 v{96 + i % 4}, s60, v{i}")
a("v_add_f32 v96, v96, v97")
a("v_add_f32 v98, v98, v99")
a("v_add_f32 v96, v96, v98")


def red8(r):
    a(f"v_add_f32_dpp {v(r)}, {v(r)}, {v(r)} quad_perm:[1,0,3,2] row_mask:0xf bank_mask:0xf")
    a(f"v_add_f32_dpp {v(r)}, {v(r)}, {v(r)} quad_perm:[2,3,0,1] row_mask:0xf bank_mask:0xf")
    a(f"v_add_f32_dpp {v(r)}, {v(r)}, {v(r)} row_half_mirror row_mask:0xf bank_mask:0xf")


red8(96)
a(f"v_mul_f32 v97, {fbits(-1.0 / 512)}, v96")
a("v_cvt_pk_bf16_f32 v98, v97, v97")
a("v_lshlrev_b32 v98, 16, v98")
a("v_sub_f32 v99, v97, v98")
for i in range(32 + 3):
    if i < 32:
        t = 100 + 2 * (i % 4)
        a(f"v_dot2_f32_bf16 v{t}, v{i}, s61, v98")
        a(f"v_dot2_f32_bf16 v{t + 1}, v{i}, s62, v98")
    k = i - 2
    if 0 <= k < 32:
        t = 100 + 2 * (k % 4)
        a(f"v_cvt_pk_bf16_f32 v{k}, v{t}, v{t + 1}")
    k = i - 3
    if 0 <= k < 32:
        a(f"v_dot2c_f32_bf16 v{108 + k % 2}, v{k}, v{k}")
        if k % 4 == 3:
            a.lds(f"ds_write_b128 v163, {v(k - 3, 4)} offset:{4096 * (k // 4)}")


def kv_reads(st):
    a.lds(f"ds_read_b128 {v(124 + 4 * (st % 9), 4)}, v{120 + st % 2} offset:{2048 * st}", ("kv", st))


a("s_cmp_eq_u32 s63, 0")
a("s_cbranch_scc0 L_A_nox")
a.lg_reset()
for st in range(9):
    kv_reads(st)
a.label("L_A_nox")
a("v_add_f32 v108, v108, v109")
red8(108)
a(f"v_mul_f32 v108, {fbits(1.0 / 512)}, v108")
a("v_fma_f32 v108, -v99, v99, v108")
a("v_max_f32 v108, 0, v108")
a("v_cvt_pk_bf16_f32 v108, v108, v108")
a("v_lshlrev_b32 v108, 16, v108")
a(f"v_add_f32 v108, {fbits(1e-5)}, v108")
a("v_cvt_pk_bf16_f32 v108, v108, v108")
a("v_lshlrev_b32 v108, 16, v108")
a("v_sqrt_f32 v108, v108")
a("v_cvt_pk_bf16_f32 v109, v108, 0")
a("v_lshlrev_b32 v108, 16, v109")
a("v_rcp_f32 v108, v108")
a.lds(f"ds_write_b32 v162, v109 offset:{M_DEN}")
a.lds(f"ds_write_b32 v162, v108 offset:{M_RSTD}")
a(f"s_cmp_ge_u32 {s(sW)}, 4")
a("s_cbranch_scc1 L_A_hi2")

a("s_waitcnt vmcnt(0)")
a(f"v_readfirstlane_b32 {s(sTAG)}, v110")
a(f"s_add_u32 {s(sTAG)}, {s(sTAG)}, 1")
a(f"v_mov_b32 v18, {s(sTAG)}")
a.lds(f"ds_write_b32 v119, v18 offset:{C_TAG}")
arrive(C_XC)
kv_lg = list(a.lg)
stamp(2)
a(f"s_cmp_lt_u32 {s(sJ)}, 4")
a("s_cbranch_scc0 L_A_kvdone")


def kv_body(isv):
    a.lg = list(kv_lg)
    a.lds("ds_read_b128 v[20:23], v117" if isv else "ds_read_b32 v20, v117", "rs")
    for st in range(16):
        a.wait_lg(("kv", st))
        xf, wf = 124 + 4 * (st % 9), 32 + 4 * st
        A_, B_ = (xf, wf) if isv else (wf, xf)
        acc = 4 * (st % 2)
        c = "0" if st < 2 else v(acc, 4)
        a(f"v_mfma_f32_16x16x32_bf16 {v(acc, 4)}, {v(A_, 4)}, {v(B_, 4)}, {c}")
        if st + 9 < 16:
            kv_reads(st + 9)
    a("v_pk_add_f32 v[0:1], v[0:1], v[4:5]")
    a("v_pk_add_f32 v[2:3], v[2:3], v[6:7]")


a(f"s_cmp_lt_u32 {s(sJ)}, 2")
a("s_cbranch_scc0 L_kv_v")
kv_body(False)
a("s_mov_b32 s58, 0x00ff00ff")
a("s_mov_b32 s59, 0x00ff00ff")
a("v_pk_mul_f32 v[0:1], v[0:1], v[20:21] op_sel_hi:[1,0]")
a("v_pk_mul_f32 v[2:3], v[2:3], v[20:21] op_sel_hi:[1,0]")
a("v_cvt_pk_bf16_f32 v4, v0, v1")
a("v_cvt_pk_bf16_f32 v5, v2, v3")
a("s_mov_b64 exec, s[58:59]")
a(f"buffer_store_dwordx2 v[4:5], v118, {s(SRD_WS, 4)}, s72 offen sc1")
a("s_mov_b64 exec, -1")
a("v_dot2_f32_bf16 v6, v4, v4, 0")
a("v_dot2_f32_bf16 v6, v5, v5, v6")
a("v_mov_b32 v7, v6")
a("v_permlane32_swap_b32 v6, v7")
a("v_add_f32 v6, v6, v7")
a("s_branch L_kv_pub")
a.label("L_kv_v")
kv_body(True)
a("v_pk_mul_f32 v[0:1], v[0:1], v[20:21]")
a("v_pk_mul_f32 v[2:3], v[2:3], v[22:23]")
a("v_cvt_pk_bf16_f32 v4, v0, v1")
a("v_cvt_pk_bf16_f32 v5, v2, v3")
a("s_mov_b32 exec_hi, 0")
a(f"buffer_store_dwordx2 v[4:5], v118, {s(SRD_WS, 4)}, s72 offen sc1")
a("s_mov_b64 exec, -1")
a("v_dot2_f32_bf16 v6, v4, v4, 0")
a("v_dot2_f32_bf16 v6, v5, v5, v6")
a(f"v_mov_b32 v7, 0x7f800000")
a(f"v_cmp_ge_f32 vcc, {fbits(2.0 ** 100)}, v6")
a("v_cndmask_b32_e64 v6, v7, 0, vcc")
a.label("L_kv_pub")
a(f"ds_max_u32 v119, v6 offset:{C_MK}")
a(f"v_mov_b32 v4, {s(sTAG)}")
if OPT["kvst"]:
    stamp(8)
a("s_mov_b64 exec, 1")
a("s_waitcnt vmcnt(0)")
if OPT["kvst"]:
    stamp(9)
a(f"ds_inc_rtn_u32 v6, v119, {v(vBIG)} offset:{C_KV}")
a(f"ds_read_b32 v5, v119 offset:{C_MK}")
a.wait_lg_all()
a("v_cmp_eq_u32 vcc, 3, v6")
a("s_cbranch_vccz L_kv_nofl")
a(f"buffer_store_dwordx2 v[4:5], off, {s(SRD_WS, 4)}, s73 sc1")
a.label("L_kv_nofl")
a("s_mov_b64 exec, -1")
a.label("L_A_kvdone")
stamp(3)
a("s_setprio 0")
a("s_branch L_A_noq")

a.label("L_A_hi2")
a(f"s_and_b32 s57, {s(sW)}, 1")
a(f"s_bfe_u32 s58, {s(sW)}, 0x10001")
a("s_lshl_b32 s59, s58, 15")
xc_addrs(80, 84, 59, 96, 97, LANE)
tr_swz(88, 96, 97, 1024, LANE)
a("s_lshl_b32 s60, s57, 6")
a("v_xor_b32 v88, s60, v88")
a(f"v_add_u32 v88, {L_W}, v88")
a("s_lshl_b32 s59, s58, 7")
a(f"v_and_b32 v90, 31, {v(LANE)}")
a("v_lshl_add_u32 v90, v90, 2, s59")
a(f"v_add_u32 v90, {L_MISC}, v90")
if OPT["gst"]:
    stamp(2)
arrive(C_XC)
spin_lds(C_XC, 12, 92, sleep=0)
if not OPT["gst"]:
    stamp(2)
a.lds(f"ds_read_b32 v92, v90 offset:{M_RSTD}")
a.lds(f"ds_read_b32 v94, {v(vL4)} offset:{C_TAG}")
QD = 4


def q_reads(t):
    f0 = 8 * (t % (QD + 1))
    a.lds(f"ds_read_b128 {v(f0 + 4, 4)}, v{80 + t % 4} offset:{1024 * t}", ("q", t))
    for f in range(2):
        a.lds(f"ds_read_b64_tr_b16 {v(f0 + 2 * f, 2)}, v88 offset:{2048 * t + 512 * f}", ("q", t))


for t in range(QD):
    q_reads(t)
for t in range(32):
    if t + QD < 32:
        q_reads(t + QD)
    a.wait_lg(("q", t))
    f0 = 8 * (t % (QD + 1))
    mfma32(96, f0, f0 + 4, None if t == 0 else 96)
arrive(C_QL)
stamp(3)
a(f"v_readfirstlane_b32 {s(sTAG)}, v94")
a(f"v_mul_f32 v92, {fbits(0.25 * LOG2E)}, v92")
a("v_mov_b32 v16, 0")
a("v_mov_b32 v17, 0")
a(f"v_mov_b32 v18, {L_MISC}")
a("s_lshl_b32 s59, s58, 12")
a("s_lshl_b32 s60, s57, 11")
a("s_add_u32 s59, s59, s60")
a(f"v_add_u32 v13, s59, {v(vL16)}")
for i in range(8):
    a(f"v_pk_mul_f32 {v(96 + 2 * i, 2)}, {v(96 + 2 * i, 2)}, v[92:93] op_sel_hi:[1,0]")
for i in range(8):
    a(f"v_cvt_pk_bf16_f32 {v(144 + i)}, {v(96 + 2 * i)}, {v(97 + 2 * i)}")
    if i % 4 == 3:
        a.lds(f"ds_write_b128 v13, {v(141 + i, 4)} offset:{QF + 1024 * (i // 4)}")
for i in range(4):
    a(f"v_dot2c_f32_bf16 v16, v{144 + i}, v{144 + i}")
    a(f"v_dot2c_f32_bf16 v17, v{148 + i}, v{148 + i}")
a("v_max_u32 v16, v16, v17")
a.lds(f"ds_max_u32 v18, v16 offset:{C_MQ}")
arrive(C_Q2)
a.label("L_A_noq")
stamp(4)

vK, vV, vS, vO, vQ = 0, 32, 96, 128, 160
a(f"s_mov_b32 {s(sONES)}, 0x3f803f80")
a(f"s_mov_b32 {s(sONES + 1)}, 0x3f803f80")
a("s_waitcnt vmcnt(0)")
for i in range(32):
    a(f"v_pk_mov_b32 {v(vV + 2 * i, 2)}, {s(sONES, 2)}, {s(sONES, 2)}")
for i in range(9):
    a(f"v_mov_b32 {v(vO + i)}, 0")
    a(f"v_mov_b32 {v(vO + 16 + i)}, 0")
a(f"s_mov_b32 s57, {L_MISC}")
a(f"v_lshl_add_u32 {v(vL4)}, {v(LANE)}, 3, s57")
vKA = 158
a(f"v_lshlrev_b32 {v(vKA)}, 4, {v(LANE)}")
a(f"v_lshrrev_b32 v97, 5, {v(LANE)}")
a(f"v_and_b32 v98, 15, {v(LANE)}")
a("v_lshlrev_b32 v97, 8, v97")
a(f"v_lshl_add_u32 {v(vKA + 1)}, v98, 4, v97")
sKR = 65
if OPT["rot"]:
    a(f"s_lshl_b32 s57, {s(sGQ)}, 1")
    a(f"s_add_u32 s57, s57, {s(sJ)}")
    a(f"s_add_u32 s57, s57, {s(sW)}")
    a(f"s_and_b32 {s(sKR)}, s57, 7")
else:
    a(f"s_mov_b32 {s(sKR)}, {s(sW)}")
a("s_setprio 3")
a(f"s_cmp_ge_u32 {s(sW)}, 4")
a("s_cbranch_scc1 L_A_nopoll")
for i in range(4):
    a(f"v_mov_b32 v{104 + i}, 0")
a("v_mov_b32 v108, 0xff800000")
a(f"s_lshl_b32 s59, {s(sW)}, 11")
a(f"v_add_u32 v109, s59, {v(vL16)}")
a(f"s_mov_b32 s57, {L_MISC}")
a(f"v_lshl_add_u32 v110, {v(LANE)}, 2, s57")
spin_lds(C_XC, 12, 99)
for q in range(2):
    a.lds(f"ds_write_b128 v109, v[104:107] offset:{P0 + 8192 + 1024 * q}")
a(f"s_cmp_eq_u32 {s(sW)}, 0")
a("s_cbranch_scc0 L_A_z2")
for q in range(4):
    a(f"ds_write_b32 v110, v108 offset:{MROW + 256 * q}")
a.label("L_A_z2")
a(f"s_lshl_b32 s59, {s(sW)}, 12")
a(f"v_add_u32 v109, s59, {v(vL16)}")
if not OPT["zlate"]:
    spin_lds(C_QL, 4, 99)
    for q in range(4):
        a.lds(f"ds_write_b128 v109, v[104:107] offset:{L_W - L_MISC + 1024 * q}")
a(f"v_and_b32 v98, 15, {v(LANE)}")
a(f"v_bfe_u32 v99, {v(LANE)}, 4, 1")
a(f"v_lshl_add_u32 v99, v99, 2, {s(sKR)}")
a("v_and_b32 v99, 7, v99")
a("v_lshlrev_b32 v98, 7, v98")
a("v_lshl_add_u32 v98, v99, 11, v98")
a(f"s_mov_b32 s57, {WS_KVF}")
poll_flags("s57", 32, 100, 98, wide=True)
a.label("L_A_nopoll")
stamp(5)
a(f"s_lshl_b32 s57, {s(sKR)}, 13")
if WS_K:
    a(f"s_add_u32 s57, s57, {WS_K}")
a(f"s_add_u32 s58, s57, {WS_V - WS_K}")
a("s_add_u32 s59, s57, 0x1000")
a("s_add_u32 s60, s58, 0x1000")
a("s_mov_b32 s62, 0x0000ffff")
a("s_mov_b32 s63, 0x0000ffff")
a.vm_reset()


def kv_loads(T):
    a.vmem(f"buffer_load_dwordx4 {v(vK + 4 * T, 4)}, {v(vKA)}, {s(SRD_WS, 4)}, s{57 if T < 4 else 59} offen offset:{1024 * (T % 4)} sc1", ("K", T))
    a("s_mov_b64 exec, s[62:63]")
    for u in range(2):
        b = 2 * T + u
        a.vmem(f"buffer_load_dwordx4 {v(vV + 4 * b, 4)}, {v(vKA + 1)}, {s(SRD_WS, 4)}, s{58 if b < 8 else 60} offen offset:{512 * (b % 8)} sc1", ("V", b))
    a("s_mov_b64 exec, -1")


NPRE = OPT["kvpre"]
a(f"s_cmp_ge_u32 {s(sW)}, 4")
a("s_cbranch_scc0 L_A_z4")
spin_lds(C_KVL, 8 if OPT["gfirst"] else 4, 99)
for T in range(8):
    kv_loads(T)
a.vm_reset()
arrive(C_KVL)
a("s_branch L_A_z3")
a.label("L_A_z4")
for T in range(NPRE):
    kv_loads(T)
if NPRE == 8:
    arrive(C_KVL)
a(f"v_mov_b32 v98, {L_MISC}")
a("s_mov_b32 exec_hi, 0")
a.lds(f"ds_max_u32 v98, v101 offset:{C_MKALL}")
a("s_mov_b64 exec, -1")
if OPT["zlate"]:
    spin_lds(C_QL, 4, 99, sleep=0)
    for q in range(4):
        a.lds(f"ds_write_b128 v109, v[104:107] offset:{L_W - L_MISC + 1024 * q}")
arrive(C_Q2)
a.label("L_A_z3")
spin_lds(C_Q2, 8, 99, sleep=0)
a.lds(f"ds_read_b32 v98, {v(vL4)} offset:{C_MQ}")
a.lds(f"ds_read_b32 v99, {v(vL4)} offset:{C_MKALL}")
a.lds(f"ds_read_b128 {v(vQ, 4)}, {v(vL16)} offset:{QF}")
a.wait_lg_all()
a("v_readfirstlane_b32 s66, v98")
a("v_readfirstlane_b32 s67, v99")
a("v_mov_b32 v98, s66")
a("v_mul_f32 v98, s67, v98")
a(f"v_cmp_ge_f32 vcc, {fbits(1024.0 if not OPT['force_fallback'] else -1.0)}, v98")
a("s_cbranch_vccz L_fallback")
a(f"v_mov_b32 {v(vZ)}, 0")
a(f"s_mov_b64 {s(sONES, 2)}, 0")

vm_saved = list(a.vm)


def qk(dst, T):
    a.wait_vm(("K", T))
    mfma32(dst, vK + 4 * T, vQ, None)


def pv(o, b, src):
    a.wait_vm(("V", b))
    a(f"v_smfmac_f32_32x32x32_bf16 {v(o, 16)}, {v(vV + 4 * b, 4)}, {v(src, 8)}, {v(vBIG)}")


def osum_add(qt, i):
    o = vO + 16 * (qt % 2)
    t = o + 10 + 2 * (i % 3)
    a(f"v_cvt_f64_f32 {v(t, 2)}, {v(o + i)}")
    a.lds(f"ds_add_f64 {v(vL4)}, {v(t, 2)} offset:{OSUM + qt * 4608 + 512 * i}", ("os", qt))


FAIR = {1: {0: 2, 3: 1, 6: 0}, 2: {0: 3, 2: 2, 4: 1, 6: 0}, 3: {0: 2, 4: 1}, 4: {0: 2, 2: 1, 5: 0}, 0: {0: 0}}[OPT["fair"]]
qk(vS, 0)
stamp(6)
for qt in range(8):
    o = vO + 16 * (qt % 2)
    if OPT["qtst"] and qt in (1, 2, 4, 6):
        stamp({1: 1, 2: 2, 4: 3, 6: 4}[qt])
    if qt in FAIR:
        a(f"s_setprio {FAIR[qt]}")
    for T in range(8):
        n = qt * 8 + T
        S = vS + 16 * (n % 2)
        Sn = vS + 16 * (1 - n % 2)
        e = lambda i: a(f"v_exp_f32 {v(S + i)}, {v(S + i)}")
        e(0); e(1)
        if n > 0:
            if T == 0:
                pv(vO + 16 * ((qt - 1) % 2), 15, Sn + 8)
            else:
                pv(o, 2 * T - 1, Sn + 8)
        e(2); e(3); e(4)
        if n < 63:
            if T == 7:
                a.wait_lg(("Q", qt + 1))
            qk(Sn, (T + 1) % 8)
        if T == 6 and qt < 7:
            a.lds(f"ds_read_b128 {v(vQ, 4)}, {v(vL16)} offset:{QF + 1024 * (qt + 1)}", ("Q", qt + 1))
        if qt == 0 and T + NPRE < 8:
            skip = a.newlabel("nold")
            a(f"s_cmp_ge_u32 {s(sW)}, 4")
            a(f"s_cbranch_scc1 {skip}")
            kv_loads(T + NPRE)
            if T + NPRE == 7:
                arrive(C_KVL)
            a.label(skip)
        extra = {}
        if T == 0 and qt > 0:
            extra = {13: (0, 1, 2), 14: (3, 4)}
        elif T == 1 and qt > 0:
            extra = {6: (5, 6), 8: (7, 8)}
        for i in range(5, 16):
            if i == OPT["pvpos"]:
                pv(o, 2 * T, S)
            e(i)
            for k in extra.get(i, ()):
                osum_add(qt - 1, k)
        if T == 3 and 0 < qt < 7:
            op = vO + 16 * ((qt - 1) % 2)
            if OPT["zmfma"]:
                a(f"v_mfma_f32_32x32x2_f32 {v(op, 16)}, {v(vZ)}, {v(vZ)}, 0")
            else:
                for i in range(5):
                    a(f"v_pk_mov_b32 {v(op + 2 * i, 2)}, {s(sONES, 2)}, {s(sONES, 2)}")
        if T == 3 and qt == 4:
            a.wait_lg(("os", 3))
            arrive(C_O0)
pv(vO + 16, 15, vS + 16 + 8)
for i in range(9):
    osum_add(7, i)
a.wait_lg_all()
arrive(C_O1)
a.label("L_A_attn_done")
a("s_setprio 3")
stamp(7)
a(f"s_cmp_ge_u32 {s(sW)}, 4")
a("s_cbranch_scc1 L_A_end")
if not OPT["fin0g"]:
    finalize(0, sW)
if not OPT["kvst"]:
    stamp(8)
finalize(1, sW)
if not OPT["kvst"]:
    stamp(9)
a.label("L_A_end")
stamps_out(10)
a("s_endpgm")

a.label("L_fallback")
a(f"s_cmp_ge_u32 {s(sW)}, 4")
a("s_cbranch_scc1 L_fb0")
for T in range(NPRE, 8):
    kv_loads(T)
if NPRE < 8:
    arrive(C_KVL)
a.label("L_fb0")
a("s_waitcnt vmcnt(0)")
a.vm_reset()
a.lg_reset()
a(f"v_and_b32 v144, 31, {v(LANE)}")
a("v_lshlrev_b32 v144, 2, v144")
a(f"v_add_u32 v144, {L_MISC}, v144")
a(f"v_mov_b32 v145, {v(vL16)}")
a("s_mov_b32 s57, 0")
a.label("L_fb1")
a(f"ds_read_b128 {v(vQ, 4)}, v145 offset:{QF}")
a("v_mov_b32 v146, 0xff800000")
a("s_waitcnt lgkmcnt(0)")
for T in range(8):
    mfma32(vS, vK + 4 * T, vQ, None)
    for i in range(8):
        a(f"v_max3_f32 v146, v146, {v(vS + 2 * i)}, {v(vS + 2 * i + 1)}")
a(f"ds_max_f32 v144, v146 offset:{MROW}")
a("v_add_u32 v144, 128, v144")
a("v_add_u32 v145, 1024, v145")
a("s_add_u32 s57, s57, 1")
a("s_cmp_lt_u32 s57, 8")
a("s_cbranch_scc1 L_fb1")
a.wait_lg_all()
arrive(C_MX)
spin_lds(C_MX, 8, 146)
a("v_subrev_u32 v144, 1024, v144")
a(f"v_mov_b32 v145, {v(vL16)}")
a(f"v_mov_b32 v147, {v(vL4)}")
a("s_mov_b32 s57, 0")
a.label("L_fb2")
a(f"ds_read_b128 {v(vQ, 4)}, v145 offset:{QF}")
a(f"ds_read_b32 v146, v144 offset:{MROW}")
for i in range(16):
    a(f"v_mov_b32 {v(vO + i)}, 0")
a("s_waitcnt lgkmcnt(0)")
for T in range(8):
    mfma32(vS, vK + 4 * T, vQ, None)
    for i in range(16):
        a(f"v_sub_f32 {v(vS + i)}, {v(vS + i)}, v146")
    for i in range(16):
        a(f"v_exp_f32 {v(vS + i)}, {v(vS + i)}")
    for u in range(2):
        a(f"v_smfmac_f32_32x32x32_bf16 {v(vO, 16)}, {v(vV + 4 * (2 * T + u), 4)}, {v(vS + 8 * u, 8)}, {v(vBIG)}")
for i in range(9):
    a(f"v_cvt_f64_f32 {v(148 + 2 * (i % 4), 2)}, {v(vO + i)}")
    a(f"ds_add_f64 v147, {v(148 + 2 * (i % 4), 2)} offset:{OSUM + 512 * i}")
a("v_add_u32 v144, 128, v144")
a("v_add_u32 v145, 1024, v145")
a("v_add_u32 v147, 4608, v147")
a("s_waitcnt lgkmcnt(0)")
a("s_add_u32 s57, s57, 1")
a("s_cmp_eq_u32 s57, 4")
a("s_cbranch_scc0 L_fb2n")
arrive(C_O0)
a.label("L_fb2n")
a("s_cmp_lt_u32 s57, 8")
a("s_cbranch_scc1 L_fb2")
arrive(C_O1)
a.lg_reset()
a("s_branch L_A_attn_done")

a.label("L_G")
sU, sP, sKH, sNT = 64, 65, 66, 67
a(f"s_sub_u32 {s(sU)}, {s(sW)}, 8")
a(f"s_lshr_b32 {s(sP)}, {s(sU)}, 1")
a(f"s_and_b32 {s(sKH)}, {s(sU)}, 1")
a(f"s_max_u32 s56, {s(sJ)}, 1")
a("s_sub_u32 s56, s56, 1")
a("s_min_u32 s56, s56, 3")
a(f"s_mul_i32 {s(sNT)}, {s(sJ)}, 5")
a(f"s_add_u32 {s(sNT)}, {s(sNT)}, s56")
a(f"s_mul_i32 s56, {s(sP)}, 3")
a(f"s_add_u32 {s(sNT)}, {s(sNT)}, s56")
sN3 = 68
a(f"s_sub_u32 s56, {s(sJ)}, 1")
a("s_cmp_lt_u32 s56, 3")
a(f"s_cselect_b32 {s(sN3)}, 1, 0")
a(f"s_cmp_eq_u32 {s(sP)}, 0")
a(f"s_cselect_b32 {s(sN3)}, 1, {s(sN3)}")
vXA, vXB, vTR, vDMA = 136, 140, 144, 146
sRING, sW1 = 69, 70
a(f"s_mul_i32 {s(sRING)}, {s(sU)}, 12288")
a(f"s_add_u32 {s(sRING)}, {s(sRING)}, {L_GR}")
a(f"s_mul_i32 {s(sW1)}, {s(sKH)}, {256 * 2752}")
a(f"s_lshl_b32 s56, {s(sNT)}, 6")
a(f"s_add_u32 {s(sW1)}, {s(sW1)}, s56")
if OPT["rot"]:
    a(f"s_mul_i32 s56, {s(sGQ)}, {64 * 2752}")
    a(f"s_add_u32 {s(sW1)}, {s(sW1)}, s56")
a("s_waitcnt lgkmcnt(0)")
srd(SRD_WS, P_WS, WS_SIZE)
a("s_barrier")
srd(SRD_A, P_W1, 512 * 2752)
srd(SRD_B, P_B1, 2752)
AF = lambda st, t: 96 + 12 * st + 4 * t
BF = lambda st, sl: 120 + 8 * st + 4 * sl
a(f"v_lshlrev_b32 v150, 1, {v(LANE)}")
a(f"v_cmp_gt_u32 vcc, 32, {v(LANE)}")
a("v_mov_b32 v151, 0x10000")
a("v_cndmask_b32 v150, v151, v150, vcc")
a(f"s_lshl_b32 s56, {s(sNT)}, 6")
for t in range(3):
    a(f"buffer_load_ushort {v(AF(1, t))}, v150, {s(SRD_B, 4)}, s56 offen offset:{64 * t}")
a(f"v_lshlrev_b32 {v(vL4)}, 2, {v(LANE)}")
a(f"v_lshlrev_b32 {v(vL16)}, 4, {v(LANE)}")
a(f"v_add_u32 {v(vL4)}, {L_MISC}, {v(vL4)}")
a(f"v_add_u32 {v(vL16)}, {L_MISC}, {v(vL16)}")
a(f"v_mov_b32 {v(vBIG)}, 0xdddd")
a(f"s_mul_i32 s56, {s(sKH)}, 0xc000")
xc_addrs(vXA, vXB, 56, 150, 151, LANE)
for t in range(3):
    for i in range(1, 4):
        a(f"v_mov_b32 {v(AF(1, t) + i)}, 0")
for i in range(0, 4):
    a(f"v_mov_b32 {v(BF(1, 0) + i)}, 0")
a(f"s_lshl_b32 s56, {s(sU)}, 12")
a(f"v_add_u32 v150, s56, {v(vL16)}")
for q in range(3):
    a(f"ds_write_b128 v150, {v(BF(1, 0), 4)} offset:{P0 + 16384 + 1024 * q}")
a(f"s_cmp_eq_u32 {s(sU)}, 3")
a("s_cbranch_scc1 L_G_z")
a(f"ds_write_b128 v150, {v(BF(1, 0), 4)} offset:{P0 + 16384 + 3072}")
a.label("L_G_z")
srd(SRD_D, P_WQ, 512 * 1024)
row128(149, 150, 1024, LANE)
a(f"s_lshl_b32 s57, {s(sU)}, 14")
a(f"s_add_u32 m0, s57, {L_W}")
a(f"s_lshl_b32 s58, {s(sP)}, 18")
a(f"s_lshl_b32 s57, {s(sJ)}, 7")
a("s_add_u32 s58, s58, s57")
a(f"s_lshl_b32 s59, {s(sKH)}, 1")
if OPT["rot"]:
    a(f"s_add_u32 s59, s59, {s(sGQ)}")
if not OPT["wqe"]:
    a("s_waitcnt vmcnt(0)")
for b in range(2):
    a("s_and_b32 s56, s59, 3")
    a("s_lshl_b32 s56, s56, 16")
    a("s_add_u32 s56, s56, s58")
    for i in range(8):
        a(f"buffer_load_dwordx4 v149, {s(SRD_D, 4)}, s56 offen lds")
        if 8 * b + i < 15:
            a("s_add_u32 m0, m0, 0x400")
            a("s_add_u32 s56, s56, 0x2000")
    if b == 0:
        a("s_add_u32 s59, s59, 1")
if OPT["w1l2"] == 2:
    a.comment("members 4-7 pull w1 into their XCD's L2, first-needed rows first")
    a(f"s_cmp_ge_u32 {s(sJ)}, 4")
    a("s_cbranch_scc0 L_G_nopf")
    a("s_lshr_b32 s56, s2, 3")
    a("s_and_b32 s57, s56, 1")
    a("s_lshl_b32 s57, s57, 3")
    a("s_bfe_u32 s56, s56, 0x30001")
    a("s_lshl_b32 s56, s56, 6")
    a("s_add_u32 s56, s56, s57")
    a(f"s_lshl_b32 s57, {s(sU)}, 1")
    a("s_add_u32 s56, s56, s57")
    a("s_mul_i32 s56, s56, 2752")
    a(f"v_lshlrev_b32 v155, 7, {v(LANE)}")
    a("s_mov_b32 exec_hi, 0x7ff")
    for k in range(4):
        a(f"buffer_load_dword v156, v155, {s(SRD_A, 4)}, s56 offen")
        a(f"s_add_u32 s56, s56, {16 * 2752}")
    a("s_mov_b64 exec, -1")
    a("s_waitcnt vmcnt(4)")
    a("s_branch L_G_pf")
    a.label("L_G_nopf")
a("s_waitcnt vmcnt(0)")
a.label("L_G_pf")


def w1_dma(t, nt):
    for k in range(nt):
        a(f"s_add_u32 m0, {s(sRING)}, {(t % 4) * 3072 + k * 1024}")
        if k == nt - 1:
            a(f"s_add_u32 s57, {s(sW1)}, {16 * 2752}")
        a.vmem(f"buffer_load_dwordx4 {v(vDMA + k)}, {s(SRD_A, 4)}, {s(sW1)} offen lds", ("w1", t))
    if OPT["rot"] and t in (3, 7, 11):
        a(f"s_cmp_eq_u32 {s(sGQ)}, {3 - t // 4}")
        a(f"s_cselect_b32 s58, {256 * 2752}, 0")
        a(f"s_sub_u32 {s(sW1)}, s57, s58")
    else:
        a(f"s_mov_b32 {s(sW1)}, s57")


def ffn1(nt):
    a.vm_reset()
    a.lg_reset()
    if nt == 3:
        for k in range(3):
            a(f"v_add_u32 v150, {64 * k}, {v(LANE)}")
            a("v_mul_u32_u24 v151, 43691, v150")
            a("v_lshrrev_b32 v151, 19, v151")
            a(f"v_mul_u32_u24 {v(vDMA + k)}, {2752 - 192}, v151")
            a(f"v_lshl_add_u32 {v(vDMA + k)}, v150, 4, {v(vDMA + k)}")
        a(f"v_lshrrev_b32 v150, 5, {v(LANE)}")
        a(f"v_bfe_u32 v151, {v(LANE)}, 2, 2")
        a("v_lshl_add_u32 v150, v150, 3, v151")
        a(f"v_mul_u32_u24 {v(vTR)}, 192, v150")
        a(f"v_bfe_u32 v151, {v(LANE)}, 4, 1")
        a(f"v_lshl_add_u32 {v(vTR)}, v151, 5, {v(vTR)}")
        a(f"v_and_b32 v151, 3, {v(LANE)}")
        a(f"v_lshl_add_u32 {v(vTR)}, v151, 3, {v(vTR)}")
        a(f"v_add_u32 {v(vTR)}, {s(sRING)}, {v(vTR)}")
    else:
        row128(vDMA, 150, 2752, LANE)
        a(f"v_add_u32 {v(vDMA + 1)}, {8 * 2752}, {v(vDMA)}")
        tr_swz(vTR, 150, 151, 1024, LANE)
        a(f"v_xor_b32 {v(vTR + 1)}, 64, {v(vTR)}")
        a(f"v_add_u32 {v(vTR)}, {s(sRING)}, {v(vTR)}")
        a(f"v_add_u32 {v(vTR + 1)}, {s(sRING)}, {v(vTR + 1)}")
    a(f"s_lshl_b32 s56, {s(sKH)}, 7")
    a(f"v_and_b32 v150, 31, {v(LANE)}")
    a("v_lshl_add_u32 v150, v150, 2, s56")
    a(f"v_add_u32 v150, {L_MISC}, v150")
    if OPT["gst"]:
        stamp(1)
    arrive(C_XC)
    spin_lds(C_XC, 12, 154)
    if OPT["gskip"] == 1:
        a("s_branch L_G_end")
    a("s_setprio 3")
    if OPT["w1l2"] == 1:
        l2_prefetch(SRD_A, 44032, 155, 156)
    npre = OPT["w1pre"]
    if npre:
        spin_lds(C_QL, 4, 154)
        for t in range(npre):
            w1_dma(t, nt)
    a.lds(f"ds_read_b32 v153, {v(vL4)} offset:{C_TAG}", "den")
    a.lds(f"ds_read_b32 {v(BF(1, 0))}, v150 offset:{M_DEN}", "den")
    a.lds(f"ds_read_b32 v152, v150 offset:{M_RSTD}", "den")
    a.wait_lg("den")
    a(f"v_readfirstlane_b32 {s(sTAG)}, v153")
    for k in range(nt):
        mfma32(32 * k, AF(1, k), BF(1, 0), None)
    if OPT["gate"]:
        spin_lds(C_KVL, OPT["gate"], 154)
    else:
        spin_lds(C_QL, 4, 154)
    a(f"s_setprio {OPT['gp_f1']}")
    for t in range(npre, 4):
        w1_dma(t, nt)
    if OPT["gfirst"]:
        arrive(C_KVL)
    if not OPT["gst"]:
        stamp(1)

    def reads(t):
        st = t % 2
        out = []
        for k in range(nt):
            for f in range(2):
                if nt == 3:
                    ad, off = vTR, (t % 4) * 3072 + 768 * f + 64 * k
                else:
                    ad, off = vTR + k, (t % 4) * 3072 + 512 * f
                out.append((f"ds_read_b64_tr_b16 {v(AF(st, k) + 2 * f, 2)}, {v(ad)} offset:{off}", ("f", t)))
        out.insert(2, (f"ds_read_b128 {v(BF(st, 0), 4)}, {v(vXA + t % 4)} offset:{1024 * t}", ("f", t)))
        out.insert(3, (f"ds_read_b128 {v(BF(st, 1), 4)}, {v(vXB + t % 4)} offset:{1024 * t}", ("f", t)))
        return out

    a.wait_vm(("w1", 0))
    for x in reads(0):
        a.lds(*x)
    for t in range(16):
        a.wait_lg(("f", t))
        if t + 4 < 16:
            w1_dma(t + 4, nt)
        rd = []
        if t + 1 < 16:
            a.wait_vm(("w1", t + 1))
            rd = reads(t + 1)
        st = t % 2
        pers = [2, 1, 1, 2, 1, 1] if nt == 3 else [2, 1, 2, 1]
        for k in range(nt):
            for sl in range(2):
                per = pers[2 * k + sl]
                for x in rd[:per]:
                    a.lds(*x)
                if rd[:per] and OPT["space"]:
                    a("s_waitcnt lgkmcnt(0)")
                rd = rd[per:]
                mfma32(32 * k + 16 * sl, AF(st, k), BF(st, sl), None if (t == 0 and sl == 1) else 32 * k + 16 * sl)


a(f"s_cmp_eq_u32 {s(sN3)}, 1")
a("s_cbranch_scc0 L_ffn1_2")
ffn1(3)
a("s_branch L_ffn1_done")
a.label("L_ffn1_2")
ffn1(2)
a.label("L_ffn1_done")
if OPT["gskip"] == 3:
    a("s_branch L_G_end")
a(f"s_setprio {OPT['gp_mish']}")
stamp(2)
a.lg_reset()
a.vm_reset()
a(f"v_subrev_u32 v150, {L_MISC}, {v(vL16)}")
a(f"v_add_u32 v151, {s(sRING)}, v150")
for t in range(3):
    for q in range(4):
        a.lds(f"ds_write_b128 v151, {v(32 * t + 16 + 4 * q, 4)} offset:{4096 * t + 1024 * q}")
a(f"s_xor_b32 s56, {s(sU)}, 1")
a("s_mul_i32 s56, s56, 12288")
a(f"s_add_u32 s56, s56, {L_GR}")
a("v_add_u32 v151, s56, v150")
a.wait_lg_all()
arrive(C_G1)
spin_lds(C_G1, 4, 154)
for t in range(3):
    for q in range(4):
        a.lds(f"ds_read_b128 {v(32 * t + 16 + 4 * q, 4)}, v151 offset:{4096 * t + 1024 * q}", ("x", t))
vTA, vDM2, vRES = 128, 130, 132
srd(SRD_A, P_W2, 1376 * 1024)
srd(SRD_B, P_X, 2048 * 1024)
srd(SRD_C, P_WO, 512 * 1024)
srd(SRD_D, P_OUT, 2048 * 1024)
sC, sR = 71, 72
a(f"s_and_b32 {s(sC)}, {s(sU)}, 1")
a(f"s_lshr_b32 {s(sR)}, {s(sU)}, 1")
if OPT["rswap"]:
    a(f"s_xor_b32 {s(sR)}, {s(sR)}, 1")
row128(vDM2, 156, 1024, LANE)
tr_swz(160, 156, 157, 512, LANE)
a(f"s_lshl_b32 s57, {s(sC)}, 6")
a("v_xor_b32 v160, s57, v160")
a(f"s_lshl_b32 {s(sRING)}, {s(sU)}, 14")
a(f"v_add_u32 {v(vTA)}, {s(sRING)}, v160")
a(f"v_xor_b32 {v(vTA + 1)}, 64, {v(vTA)}")
a(f"v_and_b32 v156, 31, {v(LANE)}")
a(f"v_lshrrev_b32 v157, 5, {v(LANE)}")
a("v_lshlrev_b32 v156, 10, v156")
a("v_lshl_add_u32 v161, v157, 4, v156")
a(f"v_lshlrev_b32 v163, 7, {v(LANE)}")
sOUT = 73
a(f"s_lshl_b32 {s(sOUT)}, {s(sG)}, 16")
a(f"s_lshl_b32 s57, {s(sR)}, 15")
a(f"s_add_u32 {s(sOUT)}, {s(sOUT)}, s57")
a(f"s_lshl_b32 s57, {s(sJ)}, 7")
a(f"s_add_u32 {s(sOUT)}, {s(sOUT)}, s57")
a(f"s_lshl_b32 s57, {s(sC)}, 6")
a(f"s_add_u32 {s(sOUT)}, {s(sOUT)}, s57")
NS = 22
sIW, sIA, sB0, sB1, sLO = 70, 63, 74, 75, 62
if OPT["rot"]:
    a(f"s_mul_i32 s57, {s(sJ)}, 3")
    a(f"s_mul_i32 s58, {s(sGQ)}, 5")
    a("s_add_u32 s57, s57, s58")
    a(f"s_cmp_ge_u32 s57, {NS}")
    a(f"s_cselect_b32 s58, {NS}, 0")
    a(f"s_sub_u32 {s(sIW)}, s57, s58")
else:
    a(f"s_mov_b32 {s(sIW)}, 0")
a(f"s_mov_b32 {s(sIA)}, {s(sIW)}")
a(f"s_mul_i32 {s(sLO)}, {s(sU)}, {NS}")
a(f"s_lshl_b32 s61, {s(sJ)}, 7")


def advance(si):
    a(f"s_add_u32 {s(si)}, {s(si)}, 1")
    a(f"s_cmp_eq_u32 {s(si)}, {NS}")
    a(f"s_cselect_b32 {s(si)}, 0, {s(si)}")


def w2_dma(t):
    a(f"s_add_u32 s56, {s(sIW)}, {s(sLO)}")
    a("s_lshl_b32 s56, s56, 14")
    a(f"s_add_u32 m0, {s(sRING)}, {(t % 8) * 2048}")
    a("s_add_u32 s56, s56, s61")
    a.vmem(f"buffer_load_dwordx4 {v(vDM2)}, {s(SRD_A, 4)}, s56 offen lds", ("w2", t))
    a("s_add_u32 m0, m0, 0x400")
    a("s_add_u32 s56, s56, 0x2000")
    a.vmem(f"buffer_load_dwordx4 {v(vDM2)}, {s(SRD_A, 4)}, s56 offen lds", ("w2", t))
    advance(sIW)


def wo_dma(slot):
    a(f"s_lshl_b32 s56, {s(sU)}, 17")
    a(f"s_add_u32 m0, {s(sRING)}, {slot * 2048}")
    a("s_add_u32 s56, s56, s61")
    a(f"s_add_u32 s56, s56, {slot * 16384}")
    a.vmem(f"buffer_load_dwordx4 {v(vDM2)}, {s(SRD_C, 4)}, s56 offen lds", ("wo", slot))
    a("s_add_u32 m0, m0, 0x400")
    a("s_add_u32 s56, s56, 0x2000")
    a.vmem(f"buffer_load_dwordx4 {v(vDM2)}, {s(SRD_C, 4)}, s56 offen lds", ("wo", slot))


for t in range(4):
    w2_dma(t)
for k in range(2):
    a(f"buffer_load_dwordx4 {v(vRES + 4 * k, 4)}, v161, {s(SRD_B, 4)}, {s(sOUT)} offen offset:{32 * k}")
if OPT["sent"]:
    a.comment("mark this member's o slots as not yet written; the activation hand-off word covers these stores")
    for i in range(4):
        a(f"v_mov_b32 v{140 + i}, -1")
    a(f"s_lshl_b32 s56, {s(sG)}, 16")
    a(f"s_lshl_b32 s57, {s(sJ)}, 12")
    a("s_add_u32 s56, s56, s57")
    a(f"s_lshl_b32 s57, {s(sU)}, 10")
    a("s_add_u32 s56, s56, s57")
    a(f"s_add_u32 s56, s56, {WS_O}")
    a("s_add_u32 s57, s56, 0x8000")
    a(f"buffer_store_dwordx4 v[140:143], v150, {s(SRD_WS, 4)}, s56 offen sc1")
    a(f"buffer_store_dwordx4 v[140:143], v150, {s(SRD_WS, 4)}, s57 offen sc1")
a(f"v_mul_f32 v154, {fbits(LOG2E)}, v152")


def act_addr():
    a(f"s_lshl_b32 s56, {s(sG)}, 1")
    a(f"s_add_u32 s56, s56, {s(sKH)}")
    a("s_mul_i32 s56, s56, 86")
    a(f"s_lshl_b32 s57, {s(sNT)}, 1")
    a("s_add_u32 s56, s56, s57")
    a("s_lshl_b32 s56, s56, 10")
    a(f"s_add_u32 s56, s56, {WS_ACT}")


act_addr()
for t in range(3):
    if t == 2:
        a(f"s_cmp_eq_u32 {s(sN3)}, 1")
        a("s_cbranch_scc0 L_mish_done")
    if t == 1:
        if OPT["w2l2"]:
            l2_prefetch(SRD_A, 44032, 158, 159)
            l2_prefetch(SRD_C, 16384, 158, 159)
        act_addr()
    a.wait_lg(("x", t))
    H, U, W_ = 32 * t, 32 * t + 16, 96
    for i in range(8):
        a(f"v_pk_add_f32 {v(H + 2 * i, 2)}, {v(H + 2 * i, 2)}, {v(U + 2 * i, 2)}")
    for i in range(8):
        a(f"v_pk_mul_f32 {v(U + 2 * i, 2)}, {v(H + 2 * i, 2)}, v[154:155] op_sel_hi:[1,0]")
    for i in range(16):
        a(f"v_exp_f32 {v(U + i)}, {v(U + i)}")
    for i in range(8):
        a(f"v_pk_mul_f32 {v(H + 2 * i, 2)}, {v(H + 2 * i, 2)}, v[152:153] op_sel_hi:[1,0]")
    for i in range(8):
        a(f"v_pk_add_f32 {v(W_ + 2 * i, 2)}, {v(U + 2 * i, 2)}, 2.0 op_sel_hi:[1,0]")
    for i in range(8):
        a(f"v_pk_fma_f32 {v(U + 2 * i, 2)}, {v(U + 2 * i, 2)}, {v(W_ + 2 * i, 2)}, 2.0 op_sel_hi:[1,1,0]")
    for i in range(16):
        a(f"v_rcp_f32 {v(U + i)}, {v(U + i)}")
    for i in range(8):
        a(f"v_pk_fma_f32 {v(U + 2 * i, 2)}, {v(U + 2 * i, 2)}, -2.0, 1.0 op_sel_hi:[1,0,0]")
    for i in range(8):
        a(f"v_pk_mul_f32 {v(H + 2 * i, 2)}, {v(H + 2 * i, 2)}, {v(U + 2 * i, 2)}")
    for i in range(8):
        a(f"v_cvt_pk_bf16_f32 {v(U + i)}, {v(H + 2 * i)}, {v(H + 2 * i + 1)}")
    soff = "s56" if t < 2 else "s57"
    if t == 2:
        a("s_add_u32 s57, s56, 0x1000")
    for u in range(2):
        a.vmem(f"buffer_store_dwordx4 {v(U + 4 * u, 4)}, v150, {s(SRD_WS, 4)}, {soff} offen offset:{(2048 * t + 1024 * u) % 4096} sc1")
a.label("L_mish_done")
stamp(3)
if OPT["gskip"] == 2:
    a("s_branch L_G_end")
a.wait_vm_all()
if OPT["sent"]:
    arrive(C_O1)
    if not OPT["fin0g"]:
        arrive(C_O0)
arrive_rtn(C_ACT, 157, 58)
a("s_cmp_eq_u32 s58, 3")
a("s_cbranch_scc0 L_G_noact")
set_flag(0, 157)
a.label("L_G_noact")
for t in range(4, 8):
    w2_dma(t)
if OPT["fin0g"] == 2:
    finalize(0, sU, lane8=LANE, T=64)
a(f"s_lshl_b32 s57, {s(sG)}, 1")
a(f"s_add_u32 s58, s57, {s(sR)}")
a(f"s_mul_i32 {s(sB0)}, s58, {86 * 1024}")
a("s_xor_b32 s58, s58, 1")
a(f"s_mul_i32 {s(sB1)}, s58, {86 * 1024}")
a(f"s_add_u32 {s(sB0)}, {s(sB0)}, {WS_ACT}")
a(f"s_add_u32 {s(sB1)}, {s(sB1)}, {WS_ACT}")
sFL = 60
a(f"s_lshl_b32 {s(sFL)}, {s(sG)}, 10")
a(f"s_add_u32 {s(sFL)}, {s(sFL)}, {WS_FLAG}")
poll_flags(s(sFL), 8, 157, 163)
stamp(4)
a.vm_reset()
a.lg_reset()
BQ = lambda t, sl: 64 + 8 * (t % 6) + 4 * sl
AF2 = lambda st, k: 112 + 8 * st + 4 * k


def act_loads(t):
    a(f"s_add_u32 s56, {s(sIA)}, {s(sLO)}")
    a("s_lshl_b32 s57, s56, 10")
    a("s_cmp_lt_u32 s56, 86")
    a("s_cselect_b32 s57, s57, 0x10000000")
    a(f"s_add_u32 s56, s57, {s(sB0)}")
    a(f"s_add_u32 s57, s57, {s(sB1)}")
    for sl in range(2):
        a.vmem(f"buffer_load_dwordx4 {v(BQ(t, sl), 4)}, v150, {s(SRD_WS, 4)}, s{56 + sl} offen sc1", ("act", t))
    advance(sIA)


def w2_reads(t):
    return [(f"ds_read_b64_tr_b16 {v(AF2(t % 2, k) + 2 * f, 2)}, {v(vTA + k)} offset:{(t % 8) * 2048 + 1024 * f}", ("a2", t))
            for k in range(2) for f in range(2)]


for t in range(6):
    act_loads(t)
for x in w2_reads(0):
    a.lds(*x)
for k in (0, 4):
    a(f"v_permlane32_swap_b32 {v(vRES + k)}, {v(vRES + k + 2)}")
    a(f"v_permlane32_swap_b32 {v(vRES + k + 1)}, {v(vRES + k + 3)}")
for i in range(8):
    a(f"v_lshlrev_b32 {v(2 * i)}, 16, {v(vRES + i)}")
    a(f"v_and_b32 {v(2 * i + 1)}, 0xffff0000, {v(vRES + i)}")
a(f"s_setprio {OPT['gp_f2']}")
for t in range(NS):
    a.wait_lg(("a2", t))
    if t + 8 < NS:
        w2_dma(t + 8)
    else:
        wo_dma(t % 8)
    a.wait_vm(("act", t), ("w2", t + 1))
    rd = w2_reads(t + 1) if t + 1 < NS else []
    for sl in range(4):
        if rd:
            a.lds(*rd[sl])
            if OPT["space"]:
                a("s_waitcnt lgkmcnt(0)")
        mfma32(16 * sl, AF2(t % 2, sl & 1), BQ(t, sl >> 1), None if (t == 0 and sl > 0) else 16 * sl)
    if t + 6 < NS:
        act_loads(t + 6)
a(f"s_setprio {OPT['gp_tail']}")
stamp(5)
if OPT["gskip"] == 4:
    a("s_branch L_G_end")
for sl in range(1, 4):
    a(f"s_xor_b32 s56, {s(sU)}, {sl}")
    a("s_mul_i32 s56, s56, 12288")
    a(f"s_add_u32 s56, s56, {L_GR + 4096 * (sl - 1)}")
    a(f"v_add_u32 v{151 + sl}, s56, v150")
for sl in range(1, 4):
    for q in range(4):
        a.lds(f"ds_write_b128 v{151 + sl}, {v(16 * sl + 4 * q, 4)} offset:{1024 * q}")
a(f"s_mul_i32 s56, {s(sU)}, 12288")
a(f"s_add_u32 s56, s56, {L_GR}")
a("v_add_u32 v151, s56, v150")
a.wait_lg_all()
a.wait_vm_all()
arrive(C_G2)
spin_lds(C_G2, 4, 157)
for sl in range(1, 4):
    for q in range(4):
        a.lds(f"ds_read_b128 {v(16 * sl + 4 * q, 4)}, v151 offset:{4096 * (sl - 1) + 1024 * q}", ("y", sl))
for sl in range(1, 4):
    a.wait_lg(("y", sl))
    for i in range(8):
        a(f"v_pk_add_f32 {v(2 * i, 2)}, {v(2 * i, 2)}, {v(16 * sl + 2 * i, 2)}")
if OPT["fin0g"] == 1:
    finalize(0, sU, lane8=LANE)
stamp(6)
a.lg_reset()
AF3 = lambda h: 144 + 4 * (h % 3)


def wo_reads(h):
    for f in range(2):
        a.lds(f"ds_read_b64_tr_b16 {v(AF3(h) + 2 * f, 2)}, v160 offset:{2048 * h + 1024 * f}", ("wo", h))


a(f"s_lshl_b32 s62, {s(sG)}, 16")
a(f"s_lshl_b32 s59, {s(sR)}, 15")
a("s_add_u32 s62, s62, s59")
a(f"s_add_u32 s62, s62, {WS_O}")
a(f"v_mov_b32 v162, v150")
if OPT["sent"]:
    a(f"v_mov_b32 v159, v151")
    for q in range(4):
        a(f"ds_write_b128 v159, {v(4 * q, 4)} offset:{1024 * q}")
    a(f"v_lshlrev_b32 v158, 10, {v(LANE)}")
    a("s_add_u32 s57, s62, 1020")
    a("s_mov_b32 s63, 0x1000")
    lo, done = a.newlabel("can"), a.newlabel("canok")
    a(f"s_mov_b32 {s(sSPIN)}, 0x8000")
    a("s_mov_b32 exec_hi, 0")
    a.label(lo)
    a(f"buffer_load_dword v157, v158, {s(SRD_WS, 4)}, s57 offen sc1")
    a("s_waitcnt vmcnt(0)")
    a("v_cmp_eq_u32 vcc, -1, v157")
    a(f"s_cbranch_vccz {done}")
    a(f"s_sleep {OPT['osleep']}")
    a(f"s_sub_u32 {s(sSPIN)}, {s(sSPIN)}, 1")
    a(f"s_cbranch_scc0 {lo}")
    a.label(done)
    a("s_mov_b64 exec, -1")
else:
    a(f"s_lshl_b32 s57, {s(sR)}, 15")
    a(f"s_add_u32 s57, s57, {s(sFL)}")
    a("s_add_u32 s57, s57, 0x8000")
    poll_flags("s57", 8, 157, 163)
stamp(7)
a.label("L_oproj")
a("s_mov_b32 s58, s62")
a.vm_reset()
a.lg_reset()
for h in range(32):
    a.vmem(f"buffer_load_dwordx4 {v(16 + 4 * h, 4)}, v162, {s(SRD_WS, 4)}, s58 offen offset:{1024 * (h % 4)} sc1", ("o", h))
    if h % 4 == 3 and h < 31:
        a("s_add_u32 s58, s58, 0x1000")
wo_reads(0)
wo_reads(1)
a("v_mov_b32 v157, 0")
for h in range(32):
    if h + 2 < 32:
        wo_reads(h + 2)
    a.wait_lg(("wo", h))
    a.wait_vm(("o", h))
    mfma32(0, AF3(h), 16 + 4 * h, 0)
    if OPT["sent"]:
        a(f"v_max3_u32 v157, v157, {v(16 + 4 * h)}, {v(17 + 4 * h)}")
        a(f"v_max3_u32 v157, v157, {v(18 + 4 * h)}, {v(19 + 4 * h)}")
if OPT["sent"]:
    a("v_cmp_eq_u32 vcc, -1, v157")
    a("s_cbranch_vccz L_oproj_ok")
    a("s_sub_u32 s63, s63, 1")
    a("s_cbranch_scc1 L_oproj_ok")
    a("s_nop 15")
    for q in range(4):
        a(f"ds_read_b128 {v(4 * q, 4)}, v159 offset:{1024 * q}")
    a("s_waitcnt lgkmcnt(0)")
    a("s_branch L_oproj")
    a.label("L_oproj_ok")
for i in range(8):
    a(f"v_cvt_pk_bf16_f32 {v(16 + i)}, {v(2 * i)}, {v(2 * i + 1)}")
for k in (0, 4):
    a(f"v_permlane32_swap_b32 {v(16 + k)}, {v(18 + k)}")
    a(f"v_permlane32_swap_b32 {v(17 + k)}, {v(19 + k)}")
for k in range(2):
    a(f"buffer_store_dwordx4 {v(16 + 4 * k, 4)}, v161, {s(SRD_D, 4)}, {s(sOUT)} offen offset:{32 * k}{['', ' sc1', ' nt', ' sc0 sc1'][OPT['ost']]}")
stamp(8)
a(f"s_xor_b32 s56, {s(sU)}, {2 if OPT['rswap'] else 0}")
a("s_or_b32 s56, s56, s2")
a("s_cbranch_scc1 L_G_end")
for i in range(8):
    a(f"s_mov_b32 s57, {WS_FLAG + 4096 * i}")
    poll_flags("s57", 32, 157, 163)
a(f"v_mov_b32 v157, {s(sTAG)}")
a(f"s_mov_b32 s57, {WS_E}")
a("s_mov_b64 exec, 1")
a(f"buffer_store_dword v157, off, {s(SRD_WS, 4)}, s57 sc1")
a.label("L_G_end")
stamps_out(9)
a.label("L_end")
a("s_endpgm")

body = hazard_pass(a.lines, verbose=True)
HEAD = open(os.path.join(os.path.dirname(os.path.abspath(__file__)), "..", "cdna_kernels", NAME + ".s.ref")).read().split("\n")
hdr = [l for l in HEAD if l.startswith(";") and "@launch" not in l and "; v1" not in l]
hdr = hdr[:13]
out = "\n".join(hdr) + "\n"
out += f"; @launch grid=(256,1,1) block=(768,1,1) lds={L_END}\n"
out += f""".amdgcn_target "amdgcn-amd-amdhsa--gfx950"
.text
.globl {NAME}_kernel
.p2align 8
.type {NAME}_kernel,@function
{NAME}_kernel:
"""
out += render(body)
out += f""".section .rodata,"a"
.p2align 6
.amdhsa_kernel {NAME}_kernel
  .amdhsa_next_free_vgpr 168
  .amdhsa_next_free_sgpr 102
  .amdhsa_accum_offset 168
  .amdhsa_group_segment_fixed_size 0
  .amdhsa_kernarg_size 96
  .amdhsa_user_sgpr_count 2
  .amdhsa_user_sgpr_kernarg_segment_ptr 1
  .amdhsa_system_sgpr_workgroup_id_x 1
.end_amdhsa_kernel
"""
open(sys.argv[1], "w").write(out)
print("lines", len(body), "LDS", L_END)
```

```python
import sys, os
sys.path.insert(0, os.path.dirname(os.path.abspath(__file__)))
from asmdsl import Asm, v, s, hazard_pass, render

NAME = "parallel_sum__grouped_kv_mqa__dense_activation_mish__prompt"

OPT = dict(stamps=False, prefetch_code=True, force_fallback=False, gp_f1=0, gp_mish=3, gp_f2=0, gp_tail=3, psleep=4, rot=1, wq_early=8, kvflag_first=1, w1_early=0, w1_mid=0, gate=4, space=0, w1pre=0, xnt=1, w1l2=0, w2l2=1, gfirst=1, pvpos=15, rswap=1, wqe=1, gst=0, zlate=0, sent=1, osleep=2, ost=0, diag=0, kvst=0, kvpre=4, fair=2, fin0g=1, gskip=0, zmfma=0, hiwait=1, qtst=0)
for a_ in sys.argv[2:]:
    k_, v_ = a_.split("=")
    OPT[k_] = int(v_)

WS_K = 0x0
WS_V = 0x10000
WS_KVF = 0x20000
WS_E = 0x24000
WS_FLAG = 0x28000
WS_O = 0x40000
WS_ACT = 0x240000
WS_STAMP = 0x800000
WS_SIZE = 0x900000
L_XC = 0
L_MISC = 65536
L_P = L_MISC + 1024
L_W = L_P + 31744
L_GR = L_W + 16384
L_END = L_W + 65536
M_RSTD, M_DEN, M_CNT = 0, 256, 512
C_KV, C_QL, C_Q2, C_KVSEEN, C_MQ, C_MK, C_MKALL, C_G1, C_ACT, C_G2, C_WO, C_O0, C_O1, C_F0, C_F1, C_MX, C_WKV, C_TAG, C_KVL, C_XC = \
    [M_CNT + 4 * i for i in range(20)]
P0 = L_P - L_MISC
QF = P0
MROW = P0 + 8192
OSUM = P0 + 9216

LOG2E = 1.4426950408889634
import struct
def fbits(x):
    return "0x%08x" % struct.unpack("<I", struct.pack("<f", x))[0]

P_X, P_WQ, P_WK, P_WV, P_WO, P_W1, P_B1, P_W2, P_OUT, P_DBG, P_WS = 8, 10, 12, 14, 16, 20, 22, 24, 26, 28, 30
sW, sG, sJ = 3, 4, 5
SRD_A, SRD_B, SRD_C, SRD_D, SRD_WS, SRD_DBG = 32, 36, 40, 44, 48, 52
sT = 56
sSPIN, sSP2 = 76, 77
sONES = 78
sTAG, sGQ = 6, 7
sSTAMP = 80
vBIG, vL4, vL16, vZ = 164, 165, 166, 167

a = Asm()
nstamp = {}


def srd(dst, ptr, size):
    a(f"s_mov_b32 {s(dst)}, {s(ptr)}")
    a(f"s_mov_b32 {s(dst + 1)}, {s(ptr + 1)}")
    a(f"s_mov_b32 {s(dst + 2)}, {size}")
    a(f"s_mov_b32 {s(dst + 3)}, 0x20000")


def diag_hold(wave, i0, i1, k):
    skip, lo = a.newlabel("dg"), a.newlabel("dgl")
    a(f"s_xor_b32 s56, {s(sW)}, {wave}")
    a("s_or_b32 s56, s56, s2")
    a(f"s_cbranch_scc1 {skip}")
    a("s_memrealtime s[58:59]")
    a("s_waitcnt lgkmcnt(0)")
    a(f"s_sub_u32 s56, {s(sSTAMP + 2 * i1)}, {s(sSTAMP + 2 * i0)}")
    a("s_min_u32 s56, s56, 10000")
    a(f"s_mul_i32 s56, s56, {k}")
    a.label(lo)
    a("s_memrealtime s[60:61]")
    a("s_waitcnt lgkmcnt(0)")
    a("s_sub_u32 s57, s60, s58")
    a("s_cmp_lt_u32 s57, s56")
    a(f"s_cbranch_scc1 {lo}")
    a.label(skip)


def stamp(i):
    if not OPT["stamps"]:
        return
    a(f"{'s_memtime' if OPT['stamps'] == 2 else 's_memrealtime'} {s(sSTAMP + 2 * i, 2)}")
    a.wait_lg_all()


def stamps_out(n):
    if OPT["diag"]:
        w, i0, i1, k = {1: (8, 0, 8, 4), 2: (0, 0, 6, 10), 3: (4, 0, 7, 4), 4: (0, 0, 1, 20), 5: (0, 0, 3, 10)}[OPT["diag"]]
        if (w >= 8) == (n == 9):
            diag_hold(w, i0, i1, k)
        return
    if not OPT["stamps"]:
        return
    a("s_waitcnt vmcnt(0) lgkmcnt(0)")
    a(f"s_mul_i32 s56, s2, 12")
    a(f"s_add_u32 s56, s56, {s(sW)}")
    a(f"s_lshl_b32 s56, s56, 6")
    a(f"s_add_u32 s56, s56, {WS_STAMP}")
    a("s_mov_b64 exec, 1")
    for i in range(n):
        a(f"v_mov_b32 v0, {s(sSTAMP + 2 * i)}")
        a(f"buffer_store_dword v0, off, {s(SRD_WS, 4)}, s56 offset:{4 * i}")
    a("s_waitcnt vmcnt(0)")


def arrive(off):
    a("s_mov_b64 exec, 1")
    a.lds(f"ds_inc_u32 {v(vL4)}, {v(vBIG)} offset:{off}")
    a("s_mov_b64 exec, -1")


def arrive_rtn(off, tmp, sdst):
    a("s_mov_b64 exec, 1")
    a.lds(f"ds_inc_rtn_u32 {v(tmp)}, {v(vL4)}, {v(vBIG)} offset:{off}")
    a("s_mov_b64 exec, -1")
    a.wait_lg_all()
    a(f"v_readfirstlane_b32 {s(sdst)}, {v(tmp)}")


def spin_lds(off, n, tmp, sleep=1):
    lo, done = a.newlabel("spin"), a.newlabel("spun")
    a(f"s_mov_b32 {s(sSPIN)}, 0x40000")
    a.label(lo)
    a(f"ds_read_b32 {v(tmp)}, {v(vL4)} offset:{off}")
    a.wait_lg_all()
    a(f"v_readfirstlane_b32 {s(sSP2)}, {v(tmp)}")
    a(f"s_cmp_ge_u32 {s(sSP2)}, {n}")
    a(f"s_cbranch_scc1 {done}")
    if sleep:
        a(f"s_sleep {sleep}")
    a(f"s_sub_u32 {s(sSPIN)}, {s(sSPIN)}, 1")
    a(f"s_cbranch_scc0 {lo}")
    a.label(done)


def poll_flags(soff, nlanes, tmp, addr, wide=False, restore=True):
    lo, done = a.newlabel("poll"), a.newlabel("polled")
    a(f"s_mov_b32 {s(sSPIN)}, 0x8000")
    a(f"s_mov_b32 exec_lo, {hex((1 << nlanes) - 1)}")
    a("s_mov_b32 exec_hi, 0")
    a.label(lo)
    if wide:
        a(f"buffer_load_dwordx2 {v(tmp, 2)}, {v(addr)}, {s(SRD_WS, 4)}, {soff} offen sc1")
    else:
        a(f"buffer_load_dword {v(tmp)}, {v(addr)}, {s(SRD_WS, 4)}, {soff} offen sc1")
    a.wait_vm_all()
    a(f"v_cmp_eq_u32 vcc, {s(sTAG)}, {v(tmp)}")
    a(f"s_cmp_eq_u64 vcc, exec")
    a(f"s_cbranch_scc1 {done}")
    a(f"s_sleep {OPT['psleep']}")
    a(f"s_sub_u32 {s(sSPIN)}, {s(sSPIN)}, 1")
    a(f"s_cbranch_scc0 {lo}")
    a.label(done)
    if restore:
        a("s_mov_b64 exec, -1")


def set_flag(k, tmp):
    a(f"s_lshl_b32 s56, {s(sG)}, 10")
    a(f"s_lshl_b32 s57, {s(sJ)}, 7")
    a("s_add_u32 s56, s56, s57")
    a(f"s_add_u32 s56, s56, {WS_FLAG + 32768 * k}")
    a("s_mov_b64 exec, 1")
    a(f"v_mov_b32 {v(tmp)}, {s(sTAG)}")
    a(f"buffer_store_dword {v(tmp)}, off, {s(SRD_WS, 4)}, s56 sc1")
    a("s_mov_b64 exec, -1")


def tr_swz(dst, t1, t2, hstride, lane):
    a(f"v_lshrrev_b32 {v(t1)}, 5, {v(lane)}")
    a(f"v_mul_u32_u24 {v(dst)}, {hstride}, {v(t1)}")
    a(f"v_bfe_u32 {v(t1)}, {v(lane)}, 2, 2")
    a(f"v_lshl_add_u32 {v(dst)}, {v(t1)}, 7, {v(dst)}")
    a(f"v_bfe_u32 {v(t1)}, {v(lane)}, 3, 1")
    a(f"v_lshl_add_u32 {v(dst)}, {v(t1)}, 6, {v(dst)}")
    a(f"v_bfe_u32 {v(t1)}, {v(lane)}, 4, 1")
    a(f"v_lshl_add_u32 {v(dst)}, {v(t1)}, 5, {v(dst)}")
    a(f"v_and_b32 {v(t1)}, 3, {v(lane)}")
    a(f"v_lshl_add_u32 {v(dst)}, {v(t1)}, 3, {v(dst)}")


def row128(dst, t1, stride, lane):
    a(f"v_lshrrev_b32 {v(t1)}, 3, {v(lane)}")
    a(f"v_mul_u32_u24 {v(dst)}, {stride}, {v(t1)}")
    a(f"v_bfe_u32 {v(t1)}, {v(lane)}, 4, 1")
    a(f"v_lshlrev_b32 {v(t1)}, 2, {v(t1)}")
    a(f"v_xor_b32 {v(t1)}, {v(t1)}, {v(lane)}")
    a(f"v_and_b32 {v(t1)}, 7, {v(t1)}")
    a(f"v_lshl_add_u32 {v(dst)}, {v(t1)}, 4, {v(dst)}")


def l2_prefetch(srdreg, per_cu, tmp, dst):
    per_wave = per_cu // 4
    a("s_lshr_b32 s56, s2, 3")
    a(f"s_mul_i32 s56, s56, {per_cu}")
    a(f"s_mul_i32 s57, {s(sU)}, {per_wave}")
    a("s_add_u32 s56, s56, s57")
    a(f"v_lshlrev_b32 {v(tmp)}, 7, {v(LANE)}")
    n = per_wave // 128
    while n > 0:
        if n < 64:
            a(f"s_mov_b32 exec_lo, {hex((1 << min(n, 32)) - 1)}")
            a(f"s_mov_b32 exec_hi, {hex((1 << max(n - 32, 0)) - 1)}")
        a.vmem(f"buffer_load_dword {v(dst)}, {v(tmp)}, {s(srdreg, 4)}, s56 offen")
        n -= 64
        if n > 0:
            a("s_add_u32 s56, s56, 0x2000")
    a("s_mov_b64 exec, -1")


def mfma32(d, A, B, C=None):
    c = "0" if C is None else v(C, 16)
    a(f"v_mfma_f32_32x32x16_bf16 {v(d, 16)}, {v(A, 4)}, {v(B, 4)}, {c}")


def tr_lane(dst, t1, t2, hstride, lane):
    a(f"v_lshrrev_b32 {v(t1)}, 5, {v(lane)}")
    a(f"v_mul_u32_u24 {v(dst)}, {hstride}, {v(t1)}")
    a(f"v_bfe_u32 {v(t1)}, {v(lane)}, 2, 2")
    a(f"v_lshl_add_u32 {v(dst)}, {v(t1)}, 6, {v(dst)}")
    a(f"v_bfe_u32 {v(t1)}, {v(lane)}, 4, 1")
    a(f"v_lshl_add_u32 {v(dst)}, {v(t1)}, 5, {v(dst)}")
    a(f"v_and_b32 {v(t1)}, 3, {v(lane)}")
    a(f"v_lshl_add_u32 {v(dst)}, {v(t1)}, 3, {v(dst)}")


def xc_addrs(xa, xb, sbase, t1, t2, lane):
    a(f"v_lshrrev_b32 {v(t1)}, 5, {v(lane)}")
    a(f"v_and_b32 {v(t2)}, 31, {v(lane)}")
    a(f"v_xor_b32 {v(t2)}, {v(t1)}, {v(t2)}")
    a(f"v_lshl_add_u32 {v(t1)}, {v(t1)}, 9, {s(sbase)}")
    for var in range(4):
        a(f"v_xor_b32 {v(xa + var)}, {2 * var}, {v(t2)}")
        a(f"v_lshl_add_u32 {v(xa + var)}, {v(xa + var)}, 4, {v(t1)}")
        a(f"v_xor_b32 {v(xb + var)}, 0x8000, {v(xa + var)}")


def finalize(r, u_sgpr, lane8=None, T=96):
    a.comment(f"finalize o, row tile {r}")
    spin_lds(C_O0 + 4 * r, 12 if (OPT["sent"] and (r == 1 or lane8 is None)) else 8, T, sleep=1 - r)
    a(f"s_mul_i32 s56, {s(u_sgpr)}, 4608")
    if lane8 is None:
        a(f"v_add_u32 {v(T + 12)}, s56, {v(vL4)}")
    else:
        a(f"s_add_u32 s56, s56, {L_MISC}")
        a(f"v_lshl_add_u32 {v(T + 12)}, {v(lane8)}, 3, s56")
    for i in (8, 0, 1, 2, 3, 4, 5, 6, 7):
        a.lds(f"ds_read_b64 {v(T + 32 + 2 * i, 2)}, {v(T + 12)} offset:{OSUM + r * 4 * 4608 + 512 * i}", ("fo", i))
    a(f"s_lshl_b32 s56, {s(sG)}, 16")
    a(f"s_lshl_b32 s57, {s(sJ)}, 12")
    a("s_add_u32 s56, s56, s57")
    a(f"s_lshl_b32 s57, {s(u_sgpr)}, 10")
    a("s_add_u32 s56, s56, s57")
    a(f"s_add_u32 s56, s56, {WS_O + r * 32768}")
    a(f"v_subrev_u32 {v(T + 13)}, {L_MISC}, {v(vL16)}")
    a.wait_lg(("fo", 8))
    a(f"v_cvt_f32_f64 {v(T + 8)}, {v(T + 48, 2)}")
    a(f"v_rcp_f32 {v(T + 8)}, {v(T + 8)}")
    a.wait_lg_all()
    for i in range(8):
        a(f"v_cvt_f32_f64 {v(T + i)}, {v(T + 32 + 2 * i, 2)}")
    for i in range(4):
        a(f"v_pk_mul_f32 {v(T + 2 * i, 2)}, {v(T + 2 * i, 2)}, {v(T + 8, 2)} op_sel_hi:[1,0]")
    for i in range(4):
        a(f"v_cvt_pk_bf16_f32 {v(T + 16 + i)}, {v(T + 2 * i)}, {v(T + 2 * i + 1)}")
    if OPT["sent"]:
        for i in range(4):
            a(f"v_min_u32 {v(T + 16 + i)}, -2, {v(T + 16 + i)}")
    a.vmem(f"buffer_store_dwordx4 {v(T + 16, 4)}, {v(T + 13)}, {s(SRD_WS, 4)}, s56 offen sc1")
    if OPT["sent"]:
        return
    a.wait_vm_all()
    arrive_rtn(C_F0 + 4 * r, T, 58)
    skip = a.newlabel("nofl")
    a("s_cmp_eq_u32 s58, 3")
    a(f"s_cbranch_scc0 {skip}")
    set_flag(1 + r, T)
    a.label(skip)


a.label("L_start")
a("s_cmp_ge_u32 s2, 256")
a("s_cbranch_scc1 L_end")
a("s_load_dwordx16 s[8:23], s[0:1], 0")
a("s_load_dwordx8 s[24:31], s[0:1], 64")
if OPT["stamps"]:
    a(f"{'s_memtime' if OPT['stamps'] == 2 else 's_memrealtime'} {s(sSTAMP, 2)}")
a("v_lshrrev_b32 v1, 6, v0")
a(f"v_and_b32 {v(vZ)}, 63, v0")
a(f"v_readfirstlane_b32 {s(sW)}, v1")
a("s_and_b32 s56, s2, 7")
a(f"s_bfe_u32 {s(sGQ)}, s2, 0x20003")
a(f"s_lshl_b32 {s(sG)}, s56, 2")
a(f"s_add_u32 {s(sG)}, {s(sG)}, {s(sGQ)}")
a(f"s_lshr_b32 {s(sJ)}, s2, 5")
LANE = vZ
a(f"s_mov_b32 s62, {WS_E}")
a(f"s_cmp_ge_u32 {s(sW)}, 8")
a("s_cbranch_scc1 L_G")

XNT = " nt" if OPT["xnt"] else ""
sRB = 64
a(f"s_lshl_b32 s56, {s(sJ)}, 2")
a(f"s_xor_b32 s56, s56, {s(sW)}")
a("s_and_b32 s56, s56, 4")
a(f"s_lshr_b32 s57, {s(sJ)}, 1")
a(f"s_add_u32 s57, s57, {s(sW)}")
a("s_and_b32 s57, s57, 3")
a(f"s_or_b32 {s(sRB)}, s56, s57")
a(f"v_lshrrev_b32 v160, 3, {v(LANE)}")
a(f"v_and_b32 v161, 7, {v(LANE)}")
a("v_lshlrev_b32 v162, 10, v160")
a("v_lshl_add_u32 v162, v161, 4, v162")
a(f"s_lshl_b32 s56, {s(sG)}, 16")
a(f"s_lshl_b32 s57, {s(sRB)}, 13")
a("s_add_u32 s56, s56, s57")
a(f"v_lshlrev_b32 {v(vL4)}, 2, {v(LANE)}")
a(f"v_add_u32 {v(vL4)}, {L_MISC}, {v(vL4)}")
a("v_mov_b32 v108, 0")
a("s_waitcnt lgkmcnt(0)")
srd(SRD_A, P_X, 2048 * 1024)
a(f"s_lshr_b32 s57, {s(sJ)}, 2")
a(f"s_lshr_b32 s58, {s(sW)}, 2")
a("s_or_b32 s63, s57, s58")
a("s_cbranch_scc1 L_A_nowkv")
a(f"s_cmp_lt_u32 {s(sJ)}, 2")
a(f"s_cselect_b32 {s(SRD_C)}, {s(P_WK)}, {s(P_WV)}")
a(f"s_cselect_b32 {s(SRD_C + 1)}, {s(P_WK + 1)}, {s(P_WV + 1)}")
a(f"s_mov_b32 {s(SRD_C + 2)}, 16384")
a(f"s_mov_b32 {s(SRD_C + 3)}, 0x20000")
a(f"v_bfe_u32 v96, {v(LANE)}, 3, 2")
a(f"v_lshrrev_b32 v97, 5, {v(LANE)}")
a("v_lshl_add_u32 v96, v96, 1, v97")
a("v_lshlrev_b32 v97, 4, v161")
a("v_lshl_add_u32 v96, v96, 7, v97")
a(f"s_lshl_b32 s57, {s(sW)}, 12")
a(f"s_add_u32 m0, s57, {L_P}")
a(f"s_lshr_b32 s58, {s(sW)}, 1")
a("s_lshl_b32 s58, s58, 13")
a(f"s_and_b32 s59, {s(sW)}, 1")
a("s_lshl_b32 s59, s59, 1")
if OPT["rot"]:
    a(f"s_add_u32 s59, s59, {s(sGQ)}")
for i in range(2):
    a("s_and_b32 s57, s59, 3")
    a("s_lshl_b32 s57, s57, 11")
    a("s_add_u32 s57, s57, s58")
    a(f"buffer_load_dwordx4 v96, {s(SRD_C, 4)}, s57 offen lds")
    a(f"buffer_load_dwordx4 v96, {s(SRD_C, 4)}, s57 offen offset:1024 lds")
    if i == 0:
        a("s_add_u32 m0, m0, 0x800")
        a("s_add_u32 s59, s59, 1")
a("s_branch L_A_first")
a.label("L_A_nowkv")
a(f"s_cmp_ge_u32 {s(sW)}, 4")
a("s_cbranch_scc0 L_A_first")
a(f"ds_write_b32 {v(vL4)}, v108 offset:{M_CNT}")
a("s_waitcnt lgkmcnt(0)")
a("s_barrier")
a.label("L_A_first")
for i in range(4):
    if OPT["rot"]:
        a(f"s_add_u32 s57, {s(sGQ)}, {i}")
        a("s_and_b32 s57, s57, 3")
        a("s_lshl_b32 s57, s57, 7")
        a(f"s_add_u32 s{68 + i}, s57, s56")
    else:
        a(f"s_add_u32 s{68 + i}, s56, {128 * i}")
    a(f"buffer_load_dwordx4 {v(4 * i, 4)}, v162, {s(SRD_A, 4)}, s{68 + i} offen{XNT}")
for i in range(4):
    a(f"buffer_load_dwordx4 {v(16 + 4 * i, 4)}, v162, {s(SRD_A, 4)}, s{68 + i} offen offset:512{XNT}")
srd(SRD_WS, P_WS, WS_SIZE)
a(f"s_cmp_ge_u32 {s(sW)}, 4")
a("s_cbranch_scc1 L_A_hi0")
a("s_setprio 2")
a(f"buffer_load_dword v110, off, {s(SRD_WS, 4)}, s62 sc1")
a("s_barrier")
a("s_branch L_A_setup")
a.label("L_A_hi0")
a("s_setprio 1")
if OPT["prefetch_code"]:
    a(f"s_cmp_eq_u32 {s(sW)}, 4")
    a("s_cbranch_scc0 L_A_setup")
    a("s_getpc_b64 s[60:61]")
    a.label("L_pcref")
    a("s_lshr_b32 s57, s2, 3")
    a("s_mul_i32 s57, s57, 1280")
    a(f"v_min_u32 v96, 9, {v(LANE)}")
    a("v_lshl_add_u32 v96, v96, 7, s57")
    a("v_min_u32 v96, L_end-L_pcref, v96")
    a("global_load_dword v111, v96, s[60:61]")
a.label("L_A_setup")
a(f"v_lshlrev_b32 {v(vL16)}, 4, {v(LANE)}")
a(f"v_add_u32 {v(vL16)}, {L_MISC}, {v(vL16)}")
a(f"v_mov_b32 {v(vBIG)}, 0xdddd")
a("v_mov_b32 v109, 0")
a(f"s_and_b32 s57, {s(sRB)}, 3")
a("s_lshl_b32 s57, s57, 3")
a("v_add_u32 v163, s57, v160")
a("v_xor_b32 v163, v163, v161")
a("v_lshlrev_b32 v163, 4, v163")
a("v_lshrrev_b32 v96, 1, v161")
a("v_lshl_add_u32 v163, v96, 10, v163")
a("v_and_b32 v96, 1, v161")
a("v_lshl_add_u32 v163, v96, 9, v163")
a(f"s_lshr_b32 s57, {s(sRB)}, 2")
a("s_lshl_b32 s57, s57, 15")
a("v_add_u32 v163, s57, v163")
a(f"s_lshl_b32 s57, {s(sRB)}, 5")
a(f"s_add_u32 s57, s57, {L_MISC}")
a("v_lshl_add_u32 v162, v160, 2, s57")
a("s_mov_b32 s60, 0x3f803f80")
a("s_mov_b32 s61, 0x00003f80")
for i in range(4):
    a(f"v_mov_b32 v{96 + i}, 0")
a(f"v_mov_b32 v119, {L_MISC}")
a(f"v_lshrrev_b32 v112, 4, {v(LANE)}")
a(f"s_and_b32 s59, {s(sRB)}, 3")
a("s_lshl_b32 s59, s59, 3")
a("v_add_u32 v114, s59, v161")
a("v_xor_b32 v114, v114, v112")
a("v_lshrrev_b32 v115, 1, v112")
a("v_and_b32 v116, 1, v112")
a("v_lshlrev_b32 v117, 10, v115")
a("v_lshl_add_u32 v117, v116, 9, v117")
a(f"s_lshr_b32 s59, {s(sRB)}, 2")
a("s_lshl_b32 s59, s59, 15")
a("v_add_u32 v117, s59, v117")
a("v_lshl_add_u32 v120, v114, 4, v117")
a("v_xor_b32 v114, 4, v114")
a("v_lshl_add_u32 v121, v114, 4, v117")
a(f"s_mov_b32 s59, {L_P}")
a(f"v_lshl_add_u32 v122, {v(LANE)}, 3, s59")
a(f"s_lshl_b32 s59, {s(sRB)}, 5")
a(f"s_add_u32 s59, s59, {L_MISC + M_RSTD}")
a(f"s_lshl_b32 s72, {s(sG)}, 11")
a(f"s_lshl_b32 s73, {s(sG)}, 2")
a(f"s_add_u32 s73, s73, {s(sJ)}")
a("s_lshl_b32 s73, s73, 7")
a(f"s_add_u32 s73, s73, {WS_KVF}")
a(f"s_cmp_lt_u32 {s(sJ)}, 2")
a("s_cbranch_scc0 L_A_sv")
a("v_lshl_add_u32 v117, v161, 2, s59")
a("v_lshlrev_b32 v118, 9, v116")
a("v_lshl_add_u32 v118, v161, 4, v118")
a("v_lshl_add_u32 v118, v115, 3, v118")
a(f"s_lshr_b32 s59, {s(sRB)}, 2")
a("s_lshl_b32 s59, s59, 10")
a("s_add_u32 s72, s72, s59")
a(f"s_and_b32 s59, {s(sRB)}, 3")
a("s_lshl_b32 s59, s59, 7")
a("s_add_u32 s72, s72, s59")
if WS_K:
    a(f"s_add_u32 s72, s72, {WS_K}")
a("s_branch L_A_sk")
a.label("L_A_sv")
a("v_lshl_add_u32 v117, v116, 4, s59")
a(f"v_and_b32 v118, 15, {v(LANE)}")
a("v_lshlrev_b32 v118, 4, v118")
a("v_lshl_add_u32 v118, v112, 3, v118")
a(f"s_lshl_b32 s59, {s(sRB)}, 8")
a("s_add_u32 s72, s72, s59")
a(f"s_add_u32 s72, s72, {WS_V}")
a.label("L_A_sk")
a("s_cmp_eq_u32 s63, 0")
a("s_cbranch_scc0 L_A_now")
a("s_waitcnt vmcnt(9)")
arrive(C_WKV)
spin_lds(C_WKV, 4, 115, sleep=0)
for st in range(16):
    for f in range(2):
        a(f"ds_read_b64_tr_b16 {v(32 + 4 * st + 2 * f, 2)}, v122 offset:{1024 * st + 512 * f}")
a.label("L_A_now")
a(f"s_cmp_ge_u32 {s(sW)}, 4")
a("s_cbranch_scc0 L_A_w1")
a("s_waitcnt vmcnt(0)")
a.label("L_A_w1")
a("s_waitcnt vmcnt(1)")
a("s_mov_b32 s62, 0x3f800000")
stamp(1)
for i in range(32):
    a(f"v_dot2c_f32_bf16 v{96 + i % 4}, s60, v{i}")
a("v_add_f32 v96, v96, v97")
a("v_add_f32 v98, v98, v99")
a("v_add_f32 v96, v96, v98")


def red8(r):
    a(f"v_add_f32_dpp {v(r)}, {v(r)}, {v(r)} quad_perm:[1,0,3,2] row_mask:0xf bank_mask:0xf")
    a(f"v_add_f32_dpp {v(r)}, {v(r)}, {v(r)} quad_perm:[2,3,0,1] row_mask:0xf bank_mask:0xf")
    a(f"v_add_f32_dpp {v(r)}, {v(r)}, {v(r)} row_half_mirror row_mask:0xf bank_mask:0xf")


red8(96)
a(f"v_mul_f32 v97, {fbits(-1.0 / 512)}, v96")
a("v_cvt_pk_bf16_f32 v98, v97, v97")
a("v_lshlrev_b32 v98, 16, v98")
a("v_sub_f32 v99, v97, v98")
for i in range(32 + 3):
    if i < 32:
        t = 100 + 2 * (i % 4)
        a(f"v_dot2_f32_bf16 v{t}, v{i}, s61, v98")
        a(f"v_dot2_f32_bf16 v{t + 1}, v{i}, s62, v98")
    k = i - 2
    if 0 <= k < 32:
        t = 100 + 2 * (k % 4)
        a(f"v_cvt_pk_bf16_f32 v{k}, v{t}, v{t + 1}")
    k = i - 3
    if 0 <= k < 32:
        a(f"v_dot2c_f32_bf16 v{108 + k % 2}, v{k}, v{k}")
        if k % 4 == 3:
            a.lds(f"ds_write_b128 v163, {v(k - 3, 4)} offset:{4096 * (k // 4)}")


def kv_reads(st):
    a.lds(f"ds_read_b128 {v(124 + 4 * (st % 9), 4)}, v{120 + st % 2} offset:{2048 * st}", ("kv", st))


a("s_cmp_eq_u32 s63, 0")
a("s_cbranch_scc0 L_A_nox")
a.lg_reset()
for st in range(9):
    kv_reads(st)
a.label("L_A_nox")
a("v_add_f32 v108, v108, v109")
red8(108)
a(f"v_mul_f32 v108, {fbits(1.0 / 512)}, v108")
a("v_fma_f32 v108, -v99, v99, v108")
a("v_max_f32 v108, 0, v108")
a("v_cvt_pk_bf16_f32 v108, v108, v108")
a("v_lshlrev_b32 v108, 16, v108")
a(f"v_add_f32 v108, {fbits(1e-5)}, v108")
a("v_cvt_pk_bf16_f32 v108, v108, v108")
a("v_lshlrev_b32 v108, 16, v108")
a("v_sqrt_f32 v108, v108")
a("v_cvt_pk_bf16_f32 v109, v108, 0")
a("v_lshlrev_b32 v108, 16, v109")
a("v_rcp_f32 v108, v108")
a.lds(f"ds_write_b32 v162, v109 offset:{M_DEN}")
a.lds(f"ds_write_b32 v162, v108 offset:{M_RSTD}")
a(f"s_cmp_ge_u32 {s(sW)}, 4")
a("s_cbranch_scc1 L_A_hi2")

a("s_waitcnt vmcnt(0)")
a(f"v_readfirstlane_b32 {s(sTAG)}, v110")
a(f"s_add_u32 {s(sTAG)}, {s(sTAG)}, 1")
a(f"v_mov_b32 v18, {s(sTAG)}")
a.lds(f"ds_write_b32 v119, v18 offset:{C_TAG}")
arrive(C_XC)
kv_lg = list(a.lg)
stamp(2)
a(f"s_cmp_lt_u32 {s(sJ)}, 4")
a("s_cbranch_scc0 L_A_kvdone")


def kv_body(isv):
    a.lg = list(kv_lg)
    a.lds("ds_read_b128 v[20:23], v117" if isv else "ds_read_b32 v20, v117", "rs")
    for st in range(16):
        a.wait_lg(("kv", st))
        xf, wf = 124 + 4 * (st % 9), 32 + 4 * st
        A_, B_ = (xf, wf) if isv else (wf, xf)
        acc = 4 * (st % 2)
        c = "0" if st < 2 else v(acc, 4)
        a(f"v_mfma_f32_16x16x32_bf16 {v(acc, 4)}, {v(A_, 4)}, {v(B_, 4)}, {c}")
        if st + 9 < 16:
            kv_reads(st + 9)
    a("v_pk_add_f32 v[0:1], v[0:1], v[4:5]")
    a("v_pk_add_f32 v[2:3], v[2:3], v[6:7]")


a(f"s_cmp_lt_u32 {s(sJ)}, 2")
a("s_cbranch_scc0 L_kv_v")
kv_body(False)
a("s_mov_b32 s58, 0x00ff00ff")
a("s_mov_b32 s59, 0x00ff00ff")
a("v_pk_mul_f32 v[0:1], v[0:1], v[20:21] op_sel_hi:[1,0]")
a("v_pk_mul_f32 v[2:3], v[2:3], v[20:21] op_sel_hi:[1,0]")
a("v_cvt_pk_bf16_f32 v4, v0, v1")
a("v_cvt_pk_bf16_f32 v5, v2, v3")
a("s_mov_b64 exec, s[58:59]")
a(f"buffer_store_dwordx2 v[4:5], v118, {s(SRD_WS, 4)}, s72 offen sc1")
a("s_mov_b64 exec, -1")
a("v_dot2_f32_bf16 v6, v4, v4, 0")
a("v_dot2_f32_bf16 v6, v5, v5, v6")
a("v_mov_b32 v7, v6")
a("v_permlane32_swap_b32 v6, v7")
a("v_add_f32 v6, v6, v7")
a("s_branch L_kv_pub")
a.label("L_kv_v")
kv_body(True)
a("v_pk_mul_f32 v[0:1], v[0:1], v[20:21]")
a("v_pk_mul_f32 v[2:3], v[2:3], v[22:23]")
a("v_cvt_pk_bf16_f32 v4, v0, v1")
a("v_cvt_pk_bf16_f32 v5, v2, v3")
a("s_mov_b32 exec_hi, 0")
a(f"buffer_store_dwordx2 v[4:5], v118, {s(SRD_WS, 4)}, s72 offen sc1")
a("s_mov_b64 exec, -1")
a("v_dot2_f32_bf16 v6, v4, v4, 0")
a("v_dot2_f32_bf16 v6, v5, v5, v6")
a(f"v_mov_b32 v7, 0x7f800000")
a(f"v_cmp_ge_f32 vcc, {fbits(2.0 ** 100)}, v6")
a("v_cndmask_b32_e64 v6, v7, 0, vcc")
a.label("L_kv_pub")
a(f"ds_max_u32 v119, v6 offset:{C_MK}")
a(f"v_mov_b32 v4, {s(sTAG)}")
if OPT["kvst"]:
    stamp(8)
a("s_mov_b64 exec, 1")
a("s_waitcnt vmcnt(0)")
if OPT["kvst"]:
    stamp(9)
a(f"ds_inc_rtn_u32 v6, v119, {v(vBIG)} offset:{C_KV}")
a(f"ds_read_b32 v5, v119 offset:{C_MK}")
a.wait_lg_all()
a("v_cmp_eq_u32 vcc, 3, v6")
a("s_cbranch_vccz L_kv_nofl")
a(f"buffer_store_dwordx2 v[4:5], off, {s(SRD_WS, 4)}, s73 sc1")
a.label("L_kv_nofl")
a("s_mov_b64 exec, -1")
a.label("L_A_kvdone")
stamp(3)
a("s_setprio 0")
a("s_branch L_A_noq")

a.label("L_A_hi2")
a(f"s_and_b32 s57, {s(sW)}, 1")
a(f"s_bfe_u32 s58, {s(sW)}, 0x10001")
a("s_lshl_b32 s59, s58, 15")
xc_addrs(80, 84, 59, 96, 97, LANE)
tr_swz(88, 96, 97, 1024, LANE)
a("s_lshl_b32 s60, s57, 6")
a("v_xor_b32 v88, s60, v88")
a(f"v_add_u32 v88, {L_W}, v88")
a("s_lshl_b32 s59, s58, 7")
a(f"v_and_b32 v90, 31, {v(LANE)}")
a("v_lshl_add_u32 v90, v90, 2, s59")
a(f"v_add_u32 v90, {L_MISC}, v90")
if OPT["gst"]:
    stamp(2)
arrive(C_XC)
spin_lds(C_XC, 12, 92, sleep=0)
if not OPT["gst"]:
    stamp(2)
a.lds(f"ds_read_b32 v92, v90 offset:{M_RSTD}")
a.lds(f"ds_read_b32 v94, {v(vL4)} offset:{C_TAG}")
QD = 4


def q_reads(t):
    f0 = 8 * (t % (QD + 1))
    a.lds(f"ds_read_b128 {v(f0 + 4, 4)}, v{80 + t % 4} offset:{1024 * t}", ("q", t))
    for f in range(2):
        a.lds(f"ds_read_b64_tr_b16 {v(f0 + 2 * f, 2)}, v88 offset:{2048 * t + 512 * f}", ("q", t))


for t in range(QD):
    q_reads(t)
for t in range(32):
    if t + QD < 32:
        q_reads(t + QD)
    a.wait_lg(("q", t))
    f0 = 8 * (t % (QD + 1))
    mfma32(96, f0, f0 + 4, None if t == 0 else 96)
arrive(C_QL)
stamp(3)
a(f"v_readfirstlane_b32 {s(sTAG)}, v94")
a(f"v_mul_f32 v92, {fbits(0.25 * LOG2E)}, v92")
a("v_mov_b32 v16, 0")
a("v_mov_b32 v17, 0")
a(f"v_mov_b32 v18, {L_MISC}")
a("s_lshl_b32 s59, s58, 12")
a("s_lshl_b32 s60, s57, 11")
a("s_add_u32 s59, s59, s60")
a(f"v_add_u32 v13, s59, {v(vL16)}")
for i in range(8):
    a(f"v_pk_mul_f32 {v(96 + 2 * i, 2)}, {v(96 + 2 * i, 2)}, v[92:93] op_sel_hi:[1,0]")
for i in range(8):
    a(f"v_cvt_pk_bf16_f32 {v(144 + i)}, {v(96 + 2 * i)}, {v(97 + 2 * i)}")
    if i % 4 == 3:
        a.lds(f"ds_write_b128 v13, {v(141 + i, 4)} offset:{QF + 1024 * (i // 4)}")
for i in range(4):
    a(f"v_dot2c_f32_bf16 v16, v{144 + i}, v{144 + i}")
    a(f"v_dot2c_f32_bf16 v17, v{148 + i}, v{148 + i}")
a("v_max_u32 v16, v16, v17")
a.lds(f"ds_max_u32 v18, v16 offset:{C_MQ}")
arrive(C_Q2)
a.label("L_A_noq")
stamp(4)

vK, vV, vS, vO, vQ = 0, 32, 96, 128, 160
a(f"s_mov_b32 {s(sONES)}, 0x3f803f80")
a(f"s_mov_b32 {s(sONES + 1)}, 0x3f803f80")
a("s_waitcnt vmcnt(0)")
for i in range(32):
    a(f"v_pk_mov_b32 {v(vV + 2 * i, 2)}, {s(sONES, 2)}, {s(sONES, 2)}")
for i in range(9):
    a(f"v_mov_b32 {v(vO + i)}, 0")
    a(f"v_mov_b32 {v(vO + 16 + i)}, 0")
a(f"s_mov_b32 s57, {L_MISC}")
a(f"v_lshl_add_u32 {v(vL4)}, {v(LANE)}, 3, s57")
vKA = 158
a(f"v_lshlrev_b32 {v(vKA)}, 4, {v(LANE)}")
a(f"v_lshrrev_b32 v97, 5, {v(LANE)}")
a(f"v_and_b32 v98, 15, {v(LANE)}")
a("v_lshlrev_b32 v97, 8, v97")
a(f"v_lshl_add_u32 {v(vKA + 1)}, v98, 4, v97")
sKR = 65
if OPT["rot"]:
    a(f"s_lshl_b32 s57, {s(sGQ)}, 1")
    a(f"s_add_u32 s57, s57, {s(sJ)}")
    a(f"s_add_u32 s57, s57, {s(sW)}")
    a(f"s_and_b32 {s(sKR)}, s57, 7")
else:
    a(f"s_mov_b32 {s(sKR)}, {s(sW)}")
a("s_setprio 3")
a(f"s_cmp_ge_u32 {s(sW)}, 4")
a("s_cbranch_scc1 L_A_nopoll")
for i in range(4):
    a(f"v_mov_b32 v{104 + i}, 0")
a("v_mov_b32 v108, 0xff800000")
a(f"s_lshl_b32 s59, {s(sW)}, 11")
a(f"v_add_u32 v109, s59, {v(vL16)}")
a(f"s_mov_b32 s57, {L_MISC}")
a(f"v_lshl_add_u32 v110, {v(LANE)}, 2, s57")
spin_lds(C_XC, 12, 99)
for q in range(2):
    a.lds(f"ds_write_b128 v109, v[104:107] offset:{P0 + 8192 + 1024 * q}")
a(f"s_cmp_eq_u32 {s(sW)}, 0")
a("s_cbranch_scc0 L_A_z2")
for q in range(4):
    a(f"ds_write_b32 v110, v108 offset:{MROW + 256 * q}")
a.label("L_A_z2")
a(f"s_lshl_b32 s59, {s(sW)}, 12")
a(f"v_add_u32 v109, s59, {v(vL16)}")
if not OPT["zlate"]:
    spin_lds(C_QL, 4, 99)
    for q in range(4):
        a.lds(f"ds_write_b128 v109, v[104:107] offset:{L_W - L_MISC + 1024 * q}")
a(f"v_and_b32 v98, 15, {v(LANE)}")
a(f"v_bfe_u32 v99, {v(LANE)}, 4, 1")
a(f"v_lshl_add_u32 v99, v99, 2, {s(sKR)}")
a("v_and_b32 v99, 7, v99")
a("v_lshlrev_b32 v98, 7, v98")
a("v_lshl_add_u32 v98, v99, 11, v98")
a(f"s_mov_b32 s57, {WS_KVF}")
poll_flags("s57", 32, 100, 98, wide=True)
a.label("L_A_nopoll")
stamp(5)
a(f"s_lshl_b32 s57, {s(sKR)}, 13")
if WS_K:
    a(f"s_add_u32 s57, s57, {WS_K}")
a(f"s_add_u32 s58, s57, {WS_V - WS_K}")
a("s_add_u32 s59, s57, 0x1000")
a("s_add_u32 s60, s58, 0x1000")
a("s_mov_b32 s62, 0x0000ffff")
a("s_mov_b32 s63, 0x0000ffff")
a.vm_reset()


def kv_loads(T):
    a.vmem(f"buffer_load_dwordx4 {v(vK + 4 * T, 4)}, {v(vKA)}, {s(SRD_WS, 4)}, s{57 if T < 4 else 59} offen offset:{1024 * (T % 4)} sc1", ("K", T))
    a("s_mov_b64 exec, s[62:63]")
    for u in range(2):
        b = 2 * T + u
        a.vmem(f"buffer_load_dwordx4 {v(vV + 4 * b, 4)}, {v(vKA + 1)}, {s(SRD_WS, 4)}, s{58 if b < 8 else 60} offen offset:{512 * (b % 8)} sc1", ("V", b))
    a("s_mov_b64 exec, -1")


NPRE = OPT["kvpre"]
a(f"s_cmp_ge_u32 {s(sW)}, 4")
a("s_cbranch_scc0 L_A_z4")
spin_lds(C_KVL, 8 if OPT["gfirst"] else 4, 99)
for T in range(8):
    kv_loads(T)
a.vm_reset()
arrive(C_KVL)
a("s_branch L_A_z3")
a.label("L_A_z4")
for T in range(NPRE):
    kv_loads(T)
if NPRE == 8:
    arrive(C_KVL)
a(f"v_mov_b32 v98, {L_MISC}")
a("s_mov_b32 exec_hi, 0")
a.lds(f"ds_max_u32 v98, v101 offset:{C_MKALL}")
a("s_mov_b64 exec, -1")
if OPT["zlate"]:
    spin_lds(C_QL, 4, 99, sleep=0)
    for q in range(4):
        a.lds(f"ds_write_b128 v109, v[104:107] offset:{L_W - L_MISC + 1024 * q}")
arrive(C_Q2)
a.label("L_A_z3")
spin_lds(C_Q2, 8, 99, sleep=0)
a.lds(f"ds_read_b32 v98, {v(vL4)} offset:{C_MQ}")
a.lds(f"ds_read_b32 v99, {v(vL4)} offset:{C_MKALL}")
a.lds(f"ds_read_b128 {v(vQ, 4)}, {v(vL16)} offset:{QF}")
a.wait_lg_all()
a("v_readfirstlane_b32 s66, v98")
a("v_readfirstlane_b32 s67, v99")
a("v_mov_b32 v98, s66")
a("v_mul_f32 v98, s67, v98")
a(f"v_cmp_ge_f32 vcc, {fbits(1024.0 if not OPT['force_fallback'] else -1.0)}, v98")
a("s_cbranch_vccz L_fallback")
a(f"v_mov_b32 {v(vZ)}, 0")
a(f"s_mov_b64 {s(sONES, 2)}, 0")

vm_saved = list(a.vm)


def qk(dst, T):
    a.wait_vm(("K", T))
    mfma32(dst, vK + 4 * T, vQ, None)


def pv(o, b, src):
    a.wait_vm(("V", b))
    a(f"v_smfmac_f32_32x32x32_bf16 {v(o, 16)}, {v(vV + 4 * b, 4)}, {v(src, 8)}, {v(vBIG)}")


def osum_add(qt, i):
    o = vO + 16 * (qt % 2)
    t = o + 10 + 2 * (i % 3)
    a(f"v_cvt_f64_f32 {v(t, 2)}, {v(o + i)}")
    a.lds(f"ds_add_f64 {v(vL4)}, {v(t, 2)} offset:{OSUM + qt * 4608 + 512 * i}", ("os", qt))


FAIR = {1: {0: 2, 3: 1, 6: 0}, 2: {0: 3, 2: 2, 4: 1, 6: 0}, 3: {0: 2, 4: 1}, 4: {0: 2, 2: 1, 5: 0}, 0: {0: 0}}[OPT["fair"]]
qk(vS, 0)
stamp(6)
for qt in range(8):
    o = vO + 16 * (qt % 2)
    if OPT["qtst"] and qt in (1, 2, 4, 6):
        stamp({1: 1, 2: 2, 4: 3, 6: 4}[qt])
    if qt in FAIR:
        a(f"s_setprio {FAIR[qt]}")
    for T in range(8):
        n = qt * 8 + T
        S = vS + 16 * (n % 2)
        Sn = vS + 16 * (1 - n % 2)
        e = lambda i: a(f"v_exp_f32 {v(S + i)}, {v(S + i)}")
        e(0); e(1)
        if n > 0:
            if T == 0:
                pv(vO + 16 * ((qt - 1) % 2), 15, Sn + 8)
            else:
                pv(o, 2 * T - 1, Sn + 8)
        e(2); e(3); e(4)
        if n < 63:
            if T == 7:
                a.wait_lg(("Q", qt + 1))
            qk(Sn, (T + 1) % 8)
        if T == 6 and qt < 7:
            a.lds(f"ds_read_b128 {v(vQ, 4)}, {v(vL16)} offset:{QF + 1024 * (qt + 1)}", ("Q", qt + 1))
        if qt == 0 and T + NPRE < 8:
            skip = a.newlabel("nold")
            a(f"s_cmp_ge_u32 {s(sW)}, 4")
            a(f"s_cbranch_scc1 {skip}")
            kv_loads(T + NPRE)
            if T + NPRE == 7:
                arrive(C_KVL)
            a.label(skip)
        extra = {}
        if T == 0 and qt > 0:
            extra = {13: (0, 1, 2), 14: (3, 4)}
        elif T == 1 and qt > 0:
            extra = {6: (5, 6), 8: (7, 8)}
        for i in range(5, 16):
            if i == OPT["pvpos"]:
                pv(o, 2 * T, S)
            e(i)
            for k in extra.get(i, ()):
                osum_add(qt - 1, k)
        if T == 3 and 0 < qt < 7:
            op = vO + 16 * ((qt - 1) % 2)
            if OPT["zmfma"]:
                a(f"v_mfma_f32_32x32x2_f32 {v(op, 16)}, {v(vZ)}, {v(vZ)}, 0")
            else:
                for i in range(5):
                    a(f"v_pk_mov_b32 {v(op + 2 * i, 2)}, {s(sONES, 2)}, {s(sONES, 2)}")
        if T == 3 and qt == 4:
            a.wait_lg(("os", 3))
            arrive(C_O0)
pv(vO + 16, 15, vS + 16 + 8)
for i in range(9):
    osum_add(7, i)
a.wait_lg_all()
arrive(C_O1)
a.label("L_A_attn_done")
a("s_setprio 3")
stamp(7)
a(f"s_cmp_ge_u32 {s(sW)}, 4")
a("s_cbranch_scc1 L_A_end")
if not OPT["fin0g"]:
    finalize(0, sW)
if not OPT["kvst"]:
    stamp(8)
finalize(1, sW)
if not OPT["kvst"]:
    stamp(9)
a.label("L_A_end")
stamps_out(10)
a("s_endpgm")

a.label("L_fallback")
a(f"s_cmp_ge_u32 {s(sW)}, 4")
a("s_cbranch_scc1 L_fb0")
for T in range(NPRE, 8):
    kv_loads(T)
if NPRE < 8:
    arrive(C_KVL)
a.label("L_fb0")
a("s_waitcnt vmcnt(0)")
a.vm_reset()
a.lg_reset()
a(f"v_and_b32 v144, 31, {v(LANE)}")
a("v_lshlrev_b32 v144, 2, v144")
a(f"v_add_u32 v144, {L_MISC}, v144")
a(f"v_mov_b32 v145, {v(vL16)}")
a("s_mov_b32 s57, 0")
a.label("L_fb1")
a(f"ds_read_b128 {v(vQ, 4)}, v145 offset:{QF}")
a("v_mov_b32 v146, 0xff800000")
a("s_waitcnt lgkmcnt(0)")
for T in range(8):
    mfma32(vS, vK + 4 * T, vQ, None)
    for i in range(8):
        a(f"v_max3_f32 v146, v146, {v(vS + 2 * i)}, {v(vS + 2 * i + 1)}")
a(f"ds_max_f32 v144, v146 offset:{MROW}")
a("v_add_u32 v144, 128, v144")
a("v_add_u32 v145, 1024, v145")
a("s_add_u32 s57, s57, 1")
a("s_cmp_lt_u32 s57, 8")
a("s_cbranch_scc1 L_fb1")
a.wait_lg_all()
arrive(C_MX)
spin_lds(C_MX, 8, 146)
a("v_subrev_u32 v144, 1024, v144")
a(f"v_mov_b32 v145, {v(vL16)}")
a(f"v_mov_b32 v147, {v(vL4)}")
a("s_mov_b32 s57, 0")
a.label("L_fb2")
a(f"ds_read_b128 {v(vQ, 4)}, v145 offset:{QF}")
a(f"ds_read_b32 v146, v144 offset:{MROW}")
for i in range(16):
    a(f"v_mov_b32 {v(vO + i)}, 0")
a("s_waitcnt lgkmcnt(0)")
for T in range(8):
    mfma32(vS, vK + 4 * T, vQ, None)
    for i in range(16):
        a(f"v_sub_f32 {v(vS + i)}, {v(vS + i)}, v146")
    for i in range(16):
        a(f"v_exp_f32 {v(vS + i)}, {v(vS + i)}")
    for u in range(2):
        a(f"v_smfmac_f32_32x32x32_bf16 {v(vO, 16)}, {v(vV + 4 * (2 * T + u), 4)}, {v(vS + 8 * u, 8)}, {v(vBIG)}")
for i in range(9):
    a(f"v_cvt_f64_f32 {v(148 + 2 * (i % 4), 2)}, {v(vO + i)}")
    a(f"ds_add_f64 v147, {v(148 + 2 * (i % 4), 2)} offset:{OSUM + 512 * i}")
a("v_add_u32 v144, 128, v144")
a("v_add_u32 v145, 1024, v145")
a("v_add_u32 v147, 4608, v147")
a("s_waitcnt lgkmcnt(0)")
a("s_add_u32 s57, s57, 1")
a("s_cmp_eq_u32 s57, 4")
a("s_cbranch_scc0 L_fb2n")
arrive(C_O0)
a.label("L_fb2n")
a("s_cmp_lt_u32 s57, 8")
a("s_cbranch_scc1 L_fb2")
arrive(C_O1)
a.lg_reset()
a("s_branch L_A_attn_done")

a.label("L_G")
sU, sP, sKH, sNT = 64, 65, 66, 67
a(f"s_sub_u32 {s(sU)}, {s(sW)}, 8")
a(f"s_lshr_b32 {s(sP)}, {s(sU)}, 1")
a(f"s_and_b32 {s(sKH)}, {s(sU)}, 1")
a(f"s_max_u32 s56, {s(sJ)}, 1")
a("s_sub_u32 s56, s56, 1")
a("s_min_u32 s56, s56, 3")
a(f"s_mul_i32 {s(sNT)}, {s(sJ)}, 5")
a(f"s_add_u32 {s(sNT)}, {s(sNT)}, s56")
a(f"s_mul_i32 s56, {s(sP)}, 3")
a(f"s_add_u32 {s(sNT)}, {s(sNT)}, s56")
sN3 = 68
a(f"s_sub_u32 s56, {s(sJ)}, 1")
a("s_cmp_lt_u32 s56, 3")
a(f"s_cselect_b32 {s(sN3)}, 1, 0")
a(f"s_cmp_eq_u32 {s(sP)}, 0")
a(f"s_cselect_b32 {s(sN3)}, 1, {s(sN3)}")
vXA, vXB, vTR, vDMA = 136, 140, 144, 146
sRING, sW1 = 69, 70
a(f"s_mul_i32 {s(sRING)}, {s(sU)}, 12288")
a(f"s_add_u32 {s(sRING)}, {s(sRING)}, {L_GR}")
a(f"s_mul_i32 {s(sW1)}, {s(sKH)}, {256 * 2752}")
a(f"s_lshl_b32 s56, {s(sNT)}, 6")
a(f"s_add_u32 {s(sW1)}, {s(sW1)}, s56")
if OPT["rot"]:
    a(f"s_mul_i32 s56, {s(sGQ)}, {64 * 2752}")
    a(f"s_add_u32 {s(sW1)}, {s(sW1)}, s56")
a("s_waitcnt lgkmcnt(0)")
srd(SRD_WS, P_WS, WS_SIZE)
a("s_barrier")
srd(SRD_A, P_W1, 512 * 2752)
srd(SRD_B, P_B1, 2752)
AF = lambda st, t: 96 + 12 * st + 4 * t
BF = lambda st, sl: 120 + 8 * st + 4 * sl
a(f"v_lshlrev_b32 v150, 1, {v(LANE)}")
a(f"v_cmp_gt_u32 vcc, 32, {v(LANE)}")
a("v_mov_b32 v151, 0x10000")
a("v_cndmask_b32 v150, v151, v150, vcc")
a(f"s_lshl_b32 s56, {s(sNT)}, 6")
for t in range(3):
    a(f"buffer_load_ushort {v(AF(1, t))}, v150, {s(SRD_B, 4)}, s56 offen offset:{64 * t}")
a(f"v_lshlrev_b32 {v(vL4)}, 2, {v(LANE)}")
a(f"v_lshlrev_b32 {v(vL16)}, 4, {v(LANE)}")
a(f"v_add_u32 {v(vL4)}, {L_MISC}, {v(vL4)}")
a(f"v_add_u32 {v(vL16)}, {L_MISC}, {v(vL16)}")
a(f"v_mov_b32 {v(vBIG)}, 0xdddd")
a(f"s_mul_i32 s56, {s(sKH)}, 0xc000")
xc_addrs(vXA, vXB, 56, 150, 151, LANE)
for t in range(3):
    for i in range(1, 4):
        a(f"v_mov_b32 {v(AF(1, t) + i)}, 0")
for i in range(0, 4):
    a(f"v_mov_b32 {v(BF(1, 0) + i)}, 0")
a(f"s_lshl_b32 s56, {s(sU)}, 12")
a(f"v_add_u32 v150, s56, {v(vL16)}")
for q in range(3):
    a(f"ds_write_b128 v150, {v(BF(1, 0), 4)} offset:{P0 + 16384 + 1024 * q}")
a(f"s_cmp_eq_u32 {s(sU)}, 3")
a("s_cbranch_scc1 L_G_z")
a(f"ds_write_b128 v150, {v(BF(1, 0), 4)} offset:{P0 + 16384 + 3072}")
a.label("L_G_z")
srd(SRD_D, P_WQ, 512 * 1024)
row128(149, 150, 1024, LANE)
a(f"s_lshl_b32 s57, {s(sU)}, 14")
a(f"s_add_u32 m0, s57, {L_W}")
a(f"s_lshl_b32 s58, {s(sP)}, 18")
a(f"s_lshl_b32 s57, {s(sJ)}, 7")
a("s_add_u32 s58, s58, s57")
a(f"s_lshl_b32 s59, {s(sKH)}, 1")
if OPT["rot"]:
    a(f"s_add_u32 s59, s59, {s(sGQ)}")
if not OPT["wqe"]:
    a("s_waitcnt vmcnt(0)")
for b in range(2):
    a("s_and_b32 s56, s59, 3")
    a("s_lshl_b32 s56, s56, 16")
    a("s_add_u32 s56, s56, s58")
    for i in range(8):
        a(f"buffer_load_dwordx4 v149, {s(SRD_D, 4)}, s56 offen lds")
        if 8 * b + i < 15:
            a("s_add_u32 m0, m0, 0x400")
            a("s_add_u32 s56, s56, 0x2000")
    if b == 0:
        a("s_add_u32 s59, s59, 1")
if OPT["w1l2"] == 2:
    a.comment("members 4-7 pull w1 into their XCD's L2, first-needed rows first")
    a(f"s_cmp_ge_u32 {s(sJ)}, 4")
    a("s_cbranch_scc0 L_G_nopf")
    a("s_lshr_b32 s56, s2, 3")
    a("s_and_b32 s57, s56, 1")
    a("s_lshl_b32 s57, s57, 3")
    a("s_bfe_u32 s56, s56, 0x30001")
    a("s_lshl_b32 s56, s56, 6")
    a("s_add_u32 s56, s56, s57")
    a(f"s_lshl_b32 s57, {s(sU)}, 1")
    a("s_add_u32 s56, s56, s57")
    a("s_mul_i32 s56, s56, 2752")
    a(f"v_lshlrev_b32 v155, 7, {v(LANE)}")
    a("s_mov_b32 exec_hi, 0x7ff")
    for k in range(4):
        a(f"buffer_load_dword v156, v155, {s(SRD_A, 4)}, s56 offen")
        a(f"s_add_u32 s56, s56, {16 * 2752}")
    a("s_mov_b64 exec, -1")
    a("s_waitcnt vmcnt(4)")
    a("s_branch L_G_pf")
    a.label("L_G_nopf")
a("s_waitcnt vmcnt(0)")
a.label("L_G_pf")


def w1_dma(t, nt):
    for k in range(nt):
        a(f"s_add_u32 m0, {s(sRING)}, {(t % 4) * 3072 + k * 1024}")
        if k == nt - 1:
            a(f"s_add_u32 s57, {s(sW1)}, {16 * 2752}")
        a.vmem(f"buffer_load_dwordx4 {v(vDMA + k)}, {s(SRD_A, 4)}, {s(sW1)} offen lds", ("w1", t))
    if OPT["rot"] and t in (3, 7, 11):
        a(f"s_cmp_eq_u32 {s(sGQ)}, {3 - t // 4}")
        a(f"s_cselect_b32 s58, {256 * 2752}, 0")
        a(f"s_sub_u32 {s(sW1)}, s57, s58")
    else:
        a(f"s_mov_b32 {s(sW1)}, s57")


def ffn1(nt):
    a.vm_reset()
    a.lg_reset()
    if nt == 3:
        for k in range(3):
            a(f"v_add_u32 v150, {64 * k}, {v(LANE)}")
            a("v_mul_u32_u24 v151, 43691, v150")
            a("v_lshrrev_b32 v151, 19, v151")
            a(f"v_mul_u32_u24 {v(vDMA + k)}, {2752 - 192}, v151")
            a(f"v_lshl_add_u32 {v(vDMA + k)}, v150, 4, {v(vDMA + k)}")
        a(f"v_lshrrev_b32 v150, 5, {v(LANE)}")
        a(f"v_bfe_u32 v151, {v(LANE)}, 2, 2")
        a("v_lshl_add_u32 v150, v150, 3, v151")
        a(f"v_mul_u32_u24 {v(vTR)}, 192, v150")
        a(f"v_bfe_u32 v151, {v(LANE)}, 4, 1")
        a(f"v_lshl_add_u32 {v(vTR)}, v151, 5, {v(vTR)}")
        a(f"v_and_b32 v151, 3, {v(LANE)}")
        a(f"v_lshl_add_u32 {v(vTR)}, v151, 3, {v(vTR)}")
        a(f"v_add_u32 {v(vTR)}, {s(sRING)}, {v(vTR)}")
    else:
        row128(vDMA, 150, 2752, LANE)
        a(f"v_add_u32 {v(vDMA + 1)}, {8 * 2752}, {v(vDMA)}")
        tr_swz(vTR, 150, 151, 1024, LANE)
        a(f"v_xor_b32 {v(vTR + 1)}, 64, {v(vTR)}")
        a(f"v_add_u32 {v(vTR)}, {s(sRING)}, {v(vTR)}")
        a(f"v_add_u32 {v(vTR + 1)}, {s(sRING)}, {v(vTR + 1)}")
    a(f"s_lshl_b32 s56, {s(sKH)}, 7")
    a(f"v_and_b32 v150, 31, {v(LANE)}")
    a("v_lshl_add_u32 v150, v150, 2, s56")
    a(f"v_add_u32 v150, {L_MISC}, v150")
    if OPT["gst"]:
        stamp(1)
    arrive(C_XC)
    spin_lds(C_XC, 12, 154)
    if OPT["gskip"] == 1:
        a("s_branch L_G_end")
    a("s_setprio 3")
    if OPT["w1l2"] == 1:
        l2_prefetch(SRD_A, 44032, 155, 156)
    npre = OPT["w1pre"]
    if npre:
        spin_lds(C_QL, 4, 154)
        for t in range(npre):
            w1_dma(t, nt)
    a.lds(f"ds_read_b32 v153, {v(vL4)} offset:{C_TAG}", "den")
    a.lds(f"ds_read_b32 {v(BF(1, 0))}, v150 offset:{M_DEN}", "den")
    a.lds(f"ds_read_b32 v152, v150 offset:{M_RSTD}", "den")
    a.wait_lg("den")
    a(f"v_readfirstlane_b32 {s(sTAG)}, v153")
    for k in range(nt):
        mfma32(32 * k, AF(1, k), BF(1, 0), None)
    if OPT["gate"]:
        spin_lds(C_KVL, OPT["gate"], 154)
    else:
        spin_lds(C_QL, 4, 154)
    a(f"s_setprio {OPT['gp_f1']}")
    for t in range(npre, 4):
        w1_dma(t, nt)
    if OPT["gfirst"]:
        arrive(C_KVL)
    if not OPT["gst"]:
        stamp(1)

    def reads(t):
        st = t % 2
        out = []
        for k in range(nt):
            for f in range(2):
                if nt == 3:
                    ad, off = vTR, (t % 4) * 3072 + 768 * f + 64 * k
                else:
                    ad, off = vTR + k, (t % 4) * 3072 + 512 * f
                out.append((f"ds_read_b64_tr_b16 {v(AF(st, k) + 2 * f, 2)}, {v(ad)} offset:{off}", ("f", t)))
        out.insert(2, (f"ds_read_b128 {v(BF(st, 0), 4)}, {v(vXA + t % 4)} offset:{1024 * t}", ("f", t)))
        out.insert(3, (f"ds_read_b128 {v(BF(st, 1), 4)}, {v(vXB + t % 4)} offset:{1024 * t}", ("f", t)))
        return out

    a.wait_vm(("w1", 0))
    for x in reads(0):
        a.lds(*x)
    for t in range(16):
        a.wait_lg(("f", t))
        if t + 4 < 16:
            w1_dma(t + 4, nt)
        rd = []
        if t + 1 < 16:
            a.wait_vm(("w1", t + 1))
            rd = reads(t + 1)
        st = t % 2
        pers = [2, 1, 1, 2, 1, 1] if nt == 3 else [2, 1, 2, 1]
        for k in range(nt):
            for sl in range(2):
                per = pers[2 * k + sl]
                for x in rd[:per]:
                    a.lds(*x)
                if rd[:per] and OPT["space"]:
                    a("s_waitcnt lgkmcnt(0)")
                rd = rd[per:]
                mfma32(32 * k + 16 * sl, AF(st, k), BF(st, sl), None if (t == 0 and sl == 1) else 32 * k + 16 * sl)


a(f"s_cmp_eq_u32 {s(sN3)}, 1")
a("s_cbranch_scc0 L_ffn1_2")
ffn1(3)
a("s_branch L_ffn1_done")
a.label("L_ffn1_2")
ffn1(2)
a.label("L_ffn1_done")
if OPT["gskip"] == 3:
    a("s_branch L_G_end")
a(f"s_setprio {OPT['gp_mish']}")
stamp(2)
a.lg_reset()
a.vm_reset()
a(f"v_subrev_u32 v150, {L_MISC}, {v(vL16)}")
a(f"v_add_u32 v151, {s(sRING)}, v150")
for t in range(3):
    for q in range(4):
        a.lds(f"ds_write_b128 v151, {v(32 * t + 16 + 4 * q, 4)} offset:{4096 * t + 1024 * q}")
a(f"s_xor_b32 s56, {s(sU)}, 1")
a("s_mul_i32 s56, s56, 12288")
a(f"s_add_u32 s56, s56, {L_GR}")
a("v_add_u32 v151, s56, v150")
a.wait_lg_all()
arrive(C_G1)
spin_lds(C_G1, 4, 154)
for t in range(3):
    for q in range(4):
        a.lds(f"ds_read_b128 {v(32 * t + 16 + 4 * q, 4)}, v151 offset:{4096 * t + 1024 * q}", ("x", t))
vTA, vDM2, vRES = 128, 130, 132
srd(SRD_A, P_W2, 1376 * 1024)
srd(SRD_B, P_X, 2048 * 1024)
srd(SRD_C, P_WO, 512 * 1024)
srd(SRD_D, P_OUT, 2048 * 1024)
sC, sR = 71, 72
a(f"s_and_b32 {s(sC)}, {s(sU)}, 1")
a(f"s_lshr_b32 {s(sR)}, {s(sU)}, 1")
if OPT["rswap"]:
    a(f"s_xor_b32 {s(sR)}, {s(sR)}, 1")
row128(vDM2, 156, 1024, LANE)
tr_swz(160, 156, 157, 512, LANE)
a(f"s_lshl_b32 s57, {s(sC)}, 6")
a("v_xor_b32 v160, s57, v160")
a(f"s_lshl_b32 {s(sRING)}, {s(sU)}, 14")
a(f"v_add_u32 {v(vTA)}, {s(sRING)}, v160")
a(f"v_xor_b32 {v(vTA + 1)}, 64, {v(vTA)}")
a(f"v_and_b32 v156, 31, {v(LANE)}")
a(f"v_lshrrev_b32 v157, 5, {v(LANE)}")
a("v_lshlrev_b32 v156, 10, v156")
a("v_lshl_add_u32 v161, v157, 4, v156")
a(f"v_lshlrev_b32 v163, 7, {v(LANE)}")
sOUT = 73
a(f"s_lshl_b32 {s(sOUT)}, {s(sG)}, 16")
a(f"s_lshl_b32 s57, {s(sR)}, 15")
a(f"s_add_u32 {s(sOUT)}, {s(sOUT)}, s57")
a(f"s_lshl_b32 s57, {s(sJ)}, 7")
a(f"s_add_u32 {s(sOUT)}, {s(sOUT)}, s57")
a(f"s_lshl_b32 s57, {s(sC)}, 6")
a(f"s_add_u32 {s(sOUT)}, {s(sOUT)}, s57")
NS = 22
sIW, sIA, sB0, sB1, sLO = 70, 63, 74, 75, 62
if OPT["rot"]:
    a(f"s_mul_i32 s57, {s(sJ)}, 3")
    a(f"s_mul_i32 s58, {s(sGQ)}, 5")
    a("s_add_u32 s57, s57, s58")
    a(f"s_cmp_ge_u32 s57, {NS}")
    a(f"s_cselect_b32 s58, {NS}, 0")
    a(f"s_sub_u32 {s(sIW)}, s57, s58")
else:
    a(f"s_mov_b32 {s(sIW)}, 0")
a(f"s_mov_b32 {s(sIA)}, {s(sIW)}")
a(f"s_mul_i32 {s(sLO)}, {s(sU)}, {NS}")
a(f"s_lshl_b32 s61, {s(sJ)}, 7")


def advance(si):
    a(f"s_add_u32 {s(si)}, {s(si)}, 1")
    a(f"s_cmp_eq_u32 {s(si)}, {NS}")
    a(f"s_cselect_b32 {s(si)}, 0, {s(si)}")


def w2_dma(t):
    a(f"s_add_u32 s56, {s(sIW)}, {s(sLO)}")
    a("s_lshl_b32 s56, s56, 14")
    a(f"s_add_u32 m0, {s(sRING)}, {(t % 8) * 2048}")
    a("s_add_u32 s56, s56, s61")
    a.vmem(f"buffer_load_dwordx4 {v(vDM2)}, {s(SRD_A, 4)}, s56 offen lds", ("w2", t))
    a("s_add_u32 m0, m0, 0x400")
    a("s_add_u32 s56, s56, 0x2000")
    a.vmem(f"buffer_load_dwordx4 {v(vDM2)}, {s(SRD_A, 4)}, s56 offen lds", ("w2", t))
    advance(sIW)


def wo_dma(slot):
    a(f"s_lshl_b32 s56, {s(sU)}, 17")
    a(f"s_add_u32 m0, {s(sRING)}, {slot * 2048}")
    a("s_add_u32 s56, s56, s61")
    a(f"s_add_u32 s56, s56, {slot * 16384}")
    a.vmem(f"buffer_load_dwordx4 {v(vDM2)}, {s(SRD_C, 4)}, s56 offen lds", ("wo", slot))
    a("s_add_u32 m0, m0, 0x400")
    a("s_add_u32 s56, s56, 0x2000")
    a.vmem(f"buffer_load_dwordx4 {v(vDM2)}, {s(SRD_C, 4)}, s56 offen lds", ("wo", slot))


for t in range(4):
    w2_dma(t)
for k in range(2):
    a(f"buffer_load_dwordx4 {v(vRES + 4 * k, 4)}, v161, {s(SRD_B, 4)}, {s(sOUT)} offen offset:{32 * k}")
if OPT["sent"]:
    a.comment("mark this member's o slots as not yet written; the activation hand-off word covers these stores")
    for i in range(4):
        a(f"v_mov_b32 v{140 + i}, -1")
    a(f"s_lshl_b32 s56, {s(sG)}, 16")
    a(f"s_lshl_b32 s57, {s(sJ)}, 12")
    a("s_add_u32 s56, s56, s57")
    a(f"s_lshl_b32 s57, {s(sU)}, 10")
    a("s_add_u32 s56, s56, s57")
    a(f"s_add_u32 s56, s56, {WS_O}")
    a("s_add_u32 s57, s56, 0x8000")
    a(f"buffer_store_dwordx4 v[140:143], v150, {s(SRD_WS, 4)}, s56 offen sc1")
    a(f"buffer_store_dwordx4 v[140:143], v150, {s(SRD_WS, 4)}, s57 offen sc1")
a(f"v_mul_f32 v154, {fbits(LOG2E)}, v152")


def act_addr():
    a(f"s_lshl_b32 s56, {s(sG)}, 1")
    a(f"s_add_u32 s56, s56, {s(sKH)}")
    a("s_mul_i32 s56, s56, 86")
    a(f"s_lshl_b32 s57, {s(sNT)}, 1")
    a("s_add_u32 s56, s56, s57")
    a("s_lshl_b32 s56, s56, 10")
    a(f"s_add_u32 s56, s56, {WS_ACT}")


act_addr()
for t in range(3):
    if t == 2:
        a(f"s_cmp_eq_u32 {s(sN3)}, 1")
        a("s_cbranch_scc0 L_mish_done")
    if t == 1:
        if OPT["w2l2"]:
            l2_prefetch(SRD_A, 44032, 158, 159)
            l2_prefetch(SRD_C, 16384, 158, 159)
        act_addr()
    a.wait_lg(("x", t))
    H, U, W_ = 32 * t, 32 * t + 16, 96
    for i in range(8):
        a(f"v_pk_add_f32 {v(H + 2 * i, 2)}, {v(H + 2 * i, 2)}, {v(U + 2 * i, 2)}")
    for i in range(8):
        a(f"v_pk_mul_f32 {v(U + 2 * i, 2)}, {v(H + 2 * i, 2)}, v[154:155] op_sel_hi:[1,0]")
    for i in range(16):
        a(f"v_exp_f32 {v(U + i)}, {v(U + i)}")
    for i in range(8):
        a(f"v_pk_mul_f32 {v(H + 2 * i, 2)}, {v(H + 2 * i, 2)}, v[152:153] op_sel_hi:[1,0]")
    for i in range(8):
        a(f"v_pk_add_f32 {v(W_ + 2 * i, 2)}, {v(U + 2 * i, 2)}, 2.0 op_sel_hi:[1,0]")
    for i in range(8):
        a(f"v_pk_fma_f32 {v(U + 2 * i, 2)}, {v(U + 2 * i, 2)}, {v(W_ + 2 * i, 2)}, 2.0 op_sel_hi:[1,1,0]")
    for i in range(16):
        a(f"v_rcp_f32 {v(U + i)}, {v(U + i)}")
    for i in range(8):
        a(f"v_pk_fma_f32 {v(U + 2 * i, 2)}, {v(U + 2 * i, 2)}, -2.0, 1.0 op_sel_hi:[1,0,0]")
    for i in range(8):
        a(f"v_pk_mul_f32 {v(H + 2 * i, 2)}, {v(H + 2 * i, 2)}, {v(U + 2 * i, 2)}")
    for i in range(8):
        a(f"v_cvt_pk_bf16_f32 {v(U + i)}, {v(H + 2 * i)}, {v(H + 2 * i + 1)}")
    soff = "s56" if t < 2 else "s57"
    if t == 2:
        a("s_add_u32 s57, s56, 0x1000")
    for u in range(2):
        a.vmem(f"buffer_store_dwordx4 {v(U + 4 * u, 4)}, v150, {s(SRD_WS, 4)}, {soff} offen offset:{(2048 * t + 1024 * u) % 4096} sc1")
a.label("L_mish_done")
stamp(3)
if OPT["gskip"] == 2:
    a("s_branch L_G_end")
a.wait_vm_all()
if OPT["sent"]:
    arrive(C_O1)
    if not OPT["fin0g"]:
        arrive(C_O0)
arrive_rtn(C_ACT, 157, 58)
a("s_cmp_eq_u32 s58, 3")
a("s_cbranch_scc0 L_G_noact")
set_flag(0, 157)
a.label("L_G_noact")
for t in range(4, 8):
    w2_dma(t)
if OPT["fin0g"] == 2:
    finalize(0, sU, lane8=LANE, T=64)
a(f"s_lshl_b32 s57, {s(sG)}, 1")
a(f"s_add_u32 s58, s57, {s(sR)}")
a(f"s_mul_i32 {s(sB0)}, s58, {86 * 1024}")
a("s_xor_b32 s58, s58, 1")
a(f"s_mul_i32 {s(sB1)}, s58, {86 * 1024}")
a(f"s_add_u32 {s(sB0)}, {s(sB0)}, {WS_ACT}")
a(f"s_add_u32 {s(sB1)}, {s(sB1)}, {WS_ACT}")
sFL = 60
a(f"s_lshl_b32 {s(sFL)}, {s(sG)}, 10")
a(f"s_add_u32 {s(sFL)}, {s(sFL)}, {WS_FLAG}")
poll_flags(s(sFL), 8, 157, 163)
stamp(4)
a.vm_reset()
a.lg_reset()
BQ = lambda t, sl: 64 + 8 * (t % 6) + 4 * sl
AF2 = lambda st, k: 112 + 8 * st + 4 * k


def act_loads(t):
    a(f"s_add_u32 s56, {s(sIA)}, {s(sLO)}")
    a("s_lshl_b32 s57, s56, 10")
    a("s_cmp_lt_u32 s56, 86")
    a("s_cselect_b32 s57, s57, 0x10000000")
    a(f"s_add_u32 s56, s57, {s(sB0)}")
    a(f"s_add_u32 s57, s57, {s(sB1)}")
    for sl in range(2):
        a.vmem(f"buffer_load_dwordx4 {v(BQ(t, sl), 4)}, v150, {s(SRD_WS, 4)}, s{56 + sl} offen sc1", ("act", t))
    advance(sIA)


def w2_reads(t):
    return [(f"ds_read_b64_tr_b16 {v(AF2(t % 2, k) + 2 * f, 2)}, {v(vTA + k)} offset:{(t % 8) * 2048 + 1024 * f}", ("a2", t))
            for k in range(2) for f in range(2)]


for t in range(6):
    act_loads(t)
for x in w2_reads(0):
    a.lds(*x)
for k in (0, 4):
    a(f"v_permlane32_swap_b32 {v(vRES + k)}, {v(vRES + k + 2)}")
    a(f"v_permlane32_swap_b32 {v(vRES + k + 1)}, {v(vRES + k + 3)}")
for i in range(8):
    a(f"v_lshlrev_b32 {v(2 * i)}, 16, {v(vRES + i)}")
    a(f"v_and_b32 {v(2 * i + 1)}, 0xffff0000, {v(vRES + i)}")
a(f"s_setprio {OPT['gp_f2']}")
for t in range(NS):
    a.wait_lg(("a2", t))
    if t + 8 < NS:
        w2_dma(t + 8)
    else:
        wo_dma(t % 8)
    a.wait_vm(("act", t), ("w2", t + 1))
    rd = w2_reads(t + 1) if t + 1 < NS else []
    for sl in range(4):
        if rd:
            a.lds(*rd[sl])
            if OPT["space"]:
                a("s_waitcnt lgkmcnt(0)")
        mfma32(16 * sl, AF2(t % 2, sl & 1), BQ(t, sl >> 1), None if (t == 0 and sl > 0) else 16 * sl)
    if t + 6 < NS:
        act_loads(t + 6)
a(f"s_setprio {OPT['gp_tail']}")
stamp(5)
if OPT["gskip"] == 4:
    a("s_branch L_G_end")
for sl in range(1, 4):
    a(f"s_xor_b32 s56, {s(sU)}, {sl}")
    a("s_mul_i32 s56, s56, 12288")
    a(f"s_add_u32 s56, s56, {L_GR + 4096 * (sl - 1)}")
    a(f"v_add_u32 v{151 + sl}, s56, v150")
for sl in range(1, 4):
    for q in range(4):
        a.lds(f"ds_write_b128 v{151 + sl}, {v(16 * sl + 4 * q, 4)} offset:{1024 * q}")
a(f"s_mul_i32 s56, {s(sU)}, 12288")
a(f"s_add_u32 s56, s56, {L_GR}")
a("v_add_u32 v151, s56, v150")
a.wait_lg_all()
a.wait_vm_all()
arrive(C_G2)
spin_lds(C_G2, 4, 157)
for sl in range(1, 4):
    for q in range(4):
        a.lds(f"ds_read_b128 {v(16 * sl + 4 * q, 4)}, v151 offset:{4096 * (sl - 1) + 1024 * q}", ("y", sl))
for sl in range(1, 4):
    a.wait_lg(("y", sl))
    for i in range(8):
        a(f"v_pk_add_f32 {v(2 * i, 2)}, {v(2 * i, 2)}, {v(16 * sl + 2 * i, 2)}")
if OPT["fin0g"] == 1:
    finalize(0, sU, lane8=LANE)
stamp(6)
a.lg_reset()
AF3 = lambda h: 144 + 4 * (h % 3)


def wo_reads(h):
    for f in range(2):
        a.lds(f"ds_read_b64_tr_b16 {v(AF3(h) + 2 * f, 2)}, v160 offset:{2048 * h + 1024 * f}", ("wo", h))


a(f"s_lshl_b32 s62, {s(sG)}, 16")
a(f"s_lshl_b32 s59, {s(sR)}, 15")
a("s_add_u32 s62, s62, s59")
a(f"s_add_u32 s62, s62, {WS_O}")
a(f"v_mov_b32 v162, v150")
if OPT["sent"]:
    a(f"v_mov_b32 v159, v151")
    for q in range(4):
        a(f"ds_write_b128 v159, {v(4 * q, 4)} offset:{1024 * q}")
    a(f"v_lshlrev_b32 v158, 10, {v(LANE)}")
    a("s_add_u32 s57, s62, 1020")
    a("s_mov_b32 s63, 0x1000")
    lo, done = a.newlabel("can"), a.newlabel("canok")
    a(f"s_mov_b32 {s(sSPIN)}, 0x8000")
    a("s_mov_b32 exec_hi, 0")
    a.label(lo)
    a(f"buffer_load_dword v157, v158, {s(SRD_WS, 4)}, s57 offen sc1")
    a("s_waitcnt vmcnt(0)")
    a("v_cmp_eq_u32 vcc, -1, v157")
    a(f"s_cbranch_vccz {done}")
    a(f"s_sleep {OPT['osleep']}")
    a(f"s_sub_u32 {s(sSPIN)}, {s(sSPIN)}, 1")
    a(f"s_cbranch_scc0 {lo}")
    a.label(done)
    a("s_mov_b64 exec, -1")
else:
    a(f"s_lshl_b32 s57, {s(sR)}, 15")
    a(f"s_add_u32 s57, s57, {s(sFL)}")
    a("s_add_u32 s57, s57, 0x8000")
    poll_flags("s57", 8, 157, 163)
stamp(7)
a.label("L_oproj")
a("s_mov_b32 s58, s62")
a.vm_reset()
a.lg_reset()
for h in range(32):
    a.vmem(f"buffer_load_dwordx4 {v(16 + 4 * h, 4)}, v162, {s(SRD_WS, 4)}, s58 offen offset:{1024 * (h % 4)} sc1", ("o", h))
    if h % 4 == 3 and h < 31:
        a("s_add_u32 s58, s58, 0x1000")
wo_reads(0)
wo_reads(1)
a("v_mov_b32 v157, 0")
for h in range(32):
    if h + 2 < 32:
        wo_reads(h + 2)
    a.wait_lg(("wo", h))
    a.wait_vm(("o", h))
    mfma32(0, AF3(h), 16 + 4 * h, 0)
    if OPT["sent"]:
        a(f"v_max3_u32 v157, v157, {v(16 + 4 * h)}, {v(17 + 4 * h)}")
        a(f"v_max3_u32 v157, v157, {v(18 + 4 * h)}, {v(19 + 4 * h)}")
if OPT["sent"]:
    a("v_cmp_eq_u32 vcc, -1, v157")
    a("s_cbranch_vccz L_oproj_ok")
    a("s_sub_u32 s63, s63, 1")
    a("s_cbranch_scc1 L_oproj_ok")
    a("s_nop 15")
    for q in range(4):
        a(f"ds_read_b128 {v(4 * q, 4)}, v159 offset:{1024 * q}")
    a("s_waitcnt lgkmcnt(0)")
    a("s_branch L_oproj")
    a.label("L_oproj_ok")
for i in range(8):
    a(f"v_cvt_pk_bf16_f32 {v(16 + i)}, {v(2 * i)}, {v(2 * i + 1)}")
for k in (0, 4):
    a(f"v_permlane32_swap_b32 {v(16 + k)}, {v(18 + k)}")
    a(f"v_permlane32_swap_b32 {v(17 + k)}, {v(19 + k)}")
for k in range(2):
    a(f"buffer_store_dwordx4 {v(16 + 4 * k, 4)}, v161, {s(SRD_D, 4)}, {s(sOUT)} offen offset:{32 * k}{['', ' sc1', ' nt', ' sc0 sc1'][OPT['ost']]}")
stamp(8)
a(f"s_xor_b32 s56, {s(sU)}, {2 if OPT['rswap'] else 0}")
a("s_or_b32 s56, s56, s2")
a("s_cbranch_scc1 L_G_end")
for i in range(8):
    a(f"s_mov_b32 s57, {WS_FLAG + 4096 * i}")
    poll_flags("s57", 32, 157, 163)
a(f"v_mov_b32 v157, {s(sTAG)}")
a(f"s_mov_b32 s57, {WS_E}")
a("s_mov_b64 exec, 1")
a(f"buffer_store_dword v157, off, {s(SRD_WS, 4)}, s57 sc1")
a.label("L_G_end")
stamps_out(9)
a.label("L_end")
a("s_endpgm")

body = hazard_pass(a.lines, verbose=True)
HEAD = open(os.path.join(os.path.dirname(os.path.abspath(__file__)), "..", "cdna_kernels", NAME + ".s.ref")).read().split("\n")
hdr = [l for l in HEAD if l.startswith(";") and "@launch" not in l and "; v1" not in l]
hdr = hdr[:13]
out = "\n".join(hdr) + "\n"
out += f"; @launch grid=(256,1,1) block=(768,1,1) lds={L_END}\n"
out += f""".amdgcn_target "amdgcn-amd-amdhsa--gfx950"
.text
.globl {NAME}_kernel
.p2align 8
.type {NAME}_kernel,@function
{NAME}_kernel:
"""
out += render(body)
out += f""".section .rodata,"a"
.p2align 6
.amdhsa_kernel {NAME}_kernel
  .amdhsa_next_free_vgpr 168
  .amdhsa_next_free_sgpr 102
  .amdhsa_accum_offset 168
  .amdhsa_group_segment_fixed_size 0
  .amdhsa_kernarg_size 96
  .amdhsa_user_sgpr_count 2
  .amdhsa_user_sgpr_kernarg_segment_ptr 1
  .amdhsa_system_sgpr_workgroup_id_x 1
.end_amdhsa_kernel
"""
open(sys.argv[1], "w").write(out)
print("lines", len(body), "LDS", L_END)
```

```python
import sys, os
sys.path.insert(0, os.path.dirname(os.path.abspath(__file__)))
from asmdsl import Asm, v, s, hazard_pass, render

NAME = "parallel_sum__grouped_kv_mqa__dense_activation_mish__prompt"

OPT = dict(stamps=False, prefetch_code=True, force_fallback=False, gp_f1=0, gp_mish=3, gp_f2=0, gp_tail=3, psleep=4, rot=1, wq_early=8, kvflag_first=1, w1_early=0, w1_mid=0, gate=4, space=0, w1pre=0, xnt=1, w1l2=0, w2l2=0, gfirst=1, pvpos=15, rswap=1, wqe=1, gst=0, zlate=0, sent=0, osleep=2, ost=2, diag=0, map2=0, kvst=0, kvpre=4, fair=1, fin0g=1, gskip=0, zmfma=0, hiwait=1, qtst=0)
for a_ in sys.argv[2:]:
    k_, v_ = a_.split("=")
    OPT[k_] = int(v_)

WS_K = 0x0
WS_V = 0x10000
WS_KVF = 0x20000
WS_E = 0x24000
WS_FLAG = 0x28000
WS_O = 0x40000
WS_ACT = 0x240000
WS_STAMP = 0x800000
WS_SIZE = 0x900000
L_XC = 0
L_MISC = 65536
L_P = L_MISC + 1024
L_W = L_P + 31744
L_GR = L_W + 16384
L_END = L_W + 65536
M_RSTD, M_DEN, M_CNT = 0, 256, 512
C_KV, C_QL, C_Q2, C_KVSEEN, C_MQ, C_MK, C_MKALL, C_G1, C_ACT, C_G2, C_WO, C_O0, C_O1, C_F0, C_F1, C_MX, C_WKV, C_TAG, C_KVL, C_XC = \
    [M_CNT + 4 * i for i in range(20)]
P0 = L_P - L_MISC
QF = P0
MROW = P0 + 8192
OSUM = P0 + 9216

LOG2E = 1.4426950408889634
import struct
def fbits(x):
    return "0x%08x" % struct.unpack("<I", struct.pack("<f", x))[0]

P_X, P_WQ, P_WK, P_WV, P_WO, P_W1, P_B1, P_W2, P_OUT, P_DBG, P_WS = 8, 10, 12, 14, 16, 20, 22, 24, 26, 28, 30
sW, sG, sJ = 3, 4, 5
SRD_A, SRD_B, SRD_C, SRD_D, SRD_WS, SRD_DBG = 32, 36, 40, 44, 48, 52
sT = 56
sSPIN, sSP2 = 76, 77
sONES = 78
sTAG, sGQ = 6, 7
sSTAMP = 80
vBIG, vL4, vL16, vZ = 164, 165, 166, 167

a = Asm()
nstamp = {}


def srd(dst, ptr, size):
    a(f"s_mov_b32 {s(dst)}, {s(ptr)}")
    a(f"s_mov_b32 {s(dst + 1)}, {s(ptr + 1)}")
    a(f"s_mov_b32 {s(dst + 2)}, {size}")
    a(f"s_mov_b32 {s(dst + 3)}, 0x20000")


def diag_hold(wave, i0, i1, k):
    skip, lo = a.newlabel("dg"), a.newlabel("dgl")
    a(f"s_xor_b32 s56, {s(sW)}, {wave}")
    a("s_or_b32 s56, s56, s2")
    a(f"s_cbranch_scc1 {skip}")
    a("s_memrealtime s[58:59]")
    a("s_waitcnt lgkmcnt(0)")
    a(f"s_sub_u32 s56, {s(sSTAMP + 2 * i1)}, {s(sSTAMP + 2 * i0)}")
    a("s_min_u32 s56, s56, 10000")
    a(f"s_mul_i32 s56, s56, {k}")
    a.label(lo)
    a("s_memrealtime s[60:61]")
    a("s_waitcnt lgkmcnt(0)")
    a("s_sub_u32 s57, s60, s58")
    a("s_cmp_lt_u32 s57, s56")
    a(f"s_cbranch_scc1 {lo}")
    a.label(skip)


def stamp(i, last=False):
    if not OPT["stamps"] or (OPT["stamps"] == 3 and not last):
        return
    a(f"{'s_memtime' if OPT['stamps'] == 2 else 's_memrealtime'} {s(sSTAMP + 2 * i, 2)}")
    a.wait_lg_all()


def stamps_out(n):
    if OPT["diag"]:
        w, i0, i1, k = {1: (8, 0, 8, 4), 2: (0, 0, 6, 10), 3: (4, 0, 7, 4), 4: (0, 0, 1, 20), 5: (0, 0, 3, 10)}[OPT["diag"]]
        if (w >= 8) == (n == 9):
            diag_hold(w, i0, i1, k)
        return
    if not OPT["stamps"]:
        return
    a("s_waitcnt vmcnt(0) lgkmcnt(0)")
    a(f"s_mul_i32 s56, s2, 12")
    a(f"s_add_u32 s56, s56, {s(sW)}")
    a(f"s_lshl_b32 s56, s56, 6")
    a(f"s_add_u32 s56, s56, {WS_STAMP}")
    a("s_mov_b64 exec, 1")
    for i in range(n):
        a(f"v_mov_b32 v0, {s(sSTAMP + 2 * i)}")
        a(f"buffer_store_dword v0, off, {s(SRD_WS, 4)}, s56 offset:{4 * i}")
    a("s_waitcnt vmcnt(0)")


def arrive(off):
    a("s_mov_b64 exec, 1")
    a.lds(f"ds_inc_u32 {v(vL4)}, {v(vBIG)} offset:{off}")
    a("s_mov_b64 exec, -1")


def arrive_rtn(off, tmp, sdst):
    a("s_mov_b64 exec, 1")
    a.lds(f"ds_inc_rtn_u32 {v(tmp)}, {v(vL4)}, {v(vBIG)} offset:{off}")
    a("s_mov_b64 exec, -1")
    a.wait_lg_all()
    a(f"v_readfirstlane_b32 {s(sdst)}, {v(tmp)}")


def spin_lds(off, n, tmp, sleep=1):
    lo, done = a.newlabel("spin"), a.newlabel("spun")
    a(f"s_mov_b32 {s(sSPIN)}, 0x40000")
    a.label(lo)
    a(f"ds_read_b32 {v(tmp)}, {v(vL4)} offset:{off}")
    a.wait_lg_all()
    a(f"v_readfirstlane_b32 {s(sSP2)}, {v(tmp)}")
    a(f"s_cmp_ge_u32 {s(sSP2)}, {n}")
    a(f"s_cbranch_scc1 {done}")
    if sleep:
        a(f"s_sleep {sleep}")
    a(f"s_sub_u32 {s(sSPIN)}, {s(sSPIN)}, 1")
    a(f"s_cbranch_scc0 {lo}")
    a.label(done)


def poll_flags(soff, nlanes, tmp, addr, wide=False, restore=True):
    lo, done = a.newlabel("poll"), a.newlabel("polled")
    a(f"s_mov_b32 {s(sSPIN)}, 0x8000")
    a(f"s_mov_b32 exec_lo, {hex((1 << nlanes) - 1)}")
    a("s_mov_b32 exec_hi, 0")
    a.label(lo)
    if wide:
        a(f"buffer_load_dwordx2 {v(tmp, 2)}, {v(addr)}, {s(SRD_WS, 4)}, {soff} offen sc1")
    else:
        a(f"buffer_load_dword {v(tmp)}, {v(addr)}, {s(SRD_WS, 4)}, {soff} offen sc1")
    a.wait_vm_all()
    a(f"v_cmp_eq_u32 vcc, {s(sTAG)}, {v(tmp)}")
    a(f"s_cmp_eq_u64 vcc, exec")
    a(f"s_cbranch_scc1 {done}")
    a(f"s_sleep {OPT['psleep']}")
    a(f"s_sub_u32 {s(sSPIN)}, {s(sSPIN)}, 1")
    a(f"s_cbranch_scc0 {lo}")
    a.label(done)
    if restore:
        a("s_mov_b64 exec, -1")


def set_flag(k, tmp):
    a(f"s_lshl_b32 s56, {s(sG)}, 10")
    a(f"s_lshl_b32 s57, {s(sJ)}, 7")
    a("s_add_u32 s56, s56, s57")
    a(f"s_add_u32 s56, s56, {WS_FLAG + 32768 * k}")
    a("s_mov_b64 exec, 1")
    a(f"v_mov_b32 {v(tmp)}, {s(sTAG)}")
    a(f"buffer_store_dword {v(tmp)}, off, {s(SRD_WS, 4)}, s56 sc1")
    a("s_mov_b64 exec, -1")


def tr_swz(dst, t1, t2, hstride, lane):
    a(f"v_lshrrev_b32 {v(t1)}, 5, {v(lane)}")
    a(f"v_mul_u32_u24 {v(dst)}, {hstride}, {v(t1)}")
    a(f"v_bfe_u32 {v(t1)}, {v(lane)}, 2, 2")
    a(f"v_lshl_add_u32 {v(dst)}, {v(t1)}, 7, {v(dst)}")
    a(f"v_bfe_u32 {v(t1)}, {v(lane)}, 3, 1")
    a(f"v_lshl_add_u32 {v(dst)}, {v(t1)}, 6, {v(dst)}")
    a(f"v_bfe_u32 {v(t1)}, {v(lane)}, 4, 1")
    a(f"v_lshl_add_u32 {v(dst)}, {v(t1)}, 5, {v(dst)}")
    a(f"v_and_b32 {v(t1)}, 3, {v(lane)}")
    a(f"v_lshl_add_u32 {v(dst)}, {v(t1)}, 3, {v(dst)}")


def row128(dst, t1, stride, lane):
    a(f"v_lshrrev_b32 {v(t1)}, 3, {v(lane)}")
    a(f"v_mul_u32_u24 {v(dst)}, {stride}, {v(t1)}")
    a(f"v_bfe_u32 {v(t1)}, {v(lane)}, 4, 1")
    a(f"v_lshlrev_b32 {v(t1)}, 2, {v(t1)}")
    a(f"v_xor_b32 {v(t1)}, {v(t1)}, {v(lane)}")
    a(f"v_and_b32 {v(t1)}, 7, {v(t1)}")
    a(f"v_lshl_add_u32 {v(dst)}, {v(t1)}, 4, {v(dst)}")


def l2_prefetch(srdreg, per_cu, tmp, dst):
    per_wave = per_cu // 4
    a("s_lshr_b32 s56, s2, 3")
    a(f"s_mul_i32 s56, s56, {per_cu}")
    a(f"s_mul_i32 s57, {s(sU)}, {per_wave}")
    a("s_add_u32 s56, s56, s57")
    a(f"v_lshlrev_b32 {v(tmp)}, 7, {v(LANE)}")
    n = per_wave // 128
    while n > 0:
        if n < 64:
            a(f"s_mov_b32 exec_lo, {hex((1 << min(n, 32)) - 1)}")
            a(f"s_mov_b32 exec_hi, {hex((1 << max(n - 32, 0)) - 1)}")
        a.vmem(f"buffer_load_dword {v(dst)}, {v(tmp)}, {s(srdreg, 4)}, s56 offen")
        n -= 64
        if n > 0:
            a("s_add_u32 s56, s56, 0x2000")
    a("s_mov_b64 exec, -1")


def mfma32(d, A, B, C=None):
    c = "0" if C is None else v(C, 16)
    a(f"v_mfma_f32_32x32x16_bf16 {v(d, 16)}, {v(A, 4)}, {v(B, 4)}, {c}")


def tr_lane(dst, t1, t2, hstride, lane):
    a(f"v_lshrrev_b32 {v(t1)}, 5, {v(lane)}")
    a(f"v_mul_u32_u24 {v(dst)}, {hstride}, {v(t1)}")
    a(f"v_bfe_u32 {v(t1)}, {v(lane)}, 2, 2")
    a(f"v_lshl_add_u32 {v(dst)}, {v(t1)}, 6, {v(dst)}")
    a(f"v_bfe_u32 {v(t1)}, {v(lane)}, 4, 1")
    a(f"v_lshl_add_u32 {v(dst)}, {v(t1)}, 5, {v(dst)}")
    a(f"v_and_b32 {v(t1)}, 3, {v(lane)}")
    a(f"v_lshl_add_u32 {v(dst)}, {v(t1)}, 3, {v(dst)}")


def xc_addrs(xa, xb, sbase, t1, t2, lane):
    a(f"v_lshrrev_b32 {v(t1)}, 5, {v(lane)}")
    a(f"v_and_b32 {v(t2)}, 31, {v(lane)}")
    a(f"v_xor_b32 {v(t2)}, {v(t1)}, {v(t2)}")
    a(f"v_lshl_add_u32 {v(t1)}, {v(t1)}, 9, {s(sbase)}")
    for var in range(4):
        a(f"v_xor_b32 {v(xa + var)}, {2 * var}, {v(t2)}")
        a(f"v_lshl_add_u32 {v(xa + var)}, {v(xa + var)}, 4, {v(t1)}")
        a(f"v_xor_b32 {v(xb + var)}, 0x8000, {v(xa + var)}")


def finalize(r, u_sgpr, lane8=None, T=96):
    a.comment(f"finalize o, row tile {r}")
    spin_lds(C_O0 + 4 * r, 12 if (OPT["sent"] and (r == 1 or lane8 is None)) else 8, T, sleep=1 - r)
    a(f"s_mul_i32 s56, {s(u_sgpr)}, 4608")
    if lane8 is None:
        a(f"v_add_u32 {v(T + 12)}, s56, {v(vL4)}")
    else:
        a(f"s_add_u32 s56, s56, {L_MISC}")
        a(f"v_lshl_add_u32 {v(T + 12)}, {v(lane8)}, 3, s56")
    for i in (8, 0, 1, 2, 3, 4, 5, 6, 7):
        a.lds(f"ds_read_b64 {v(T + 32 + 2 * i, 2)}, {v(T + 12)} offset:{OSUM + r * 4 * 4608 + 512 * i}", ("fo", i))
    a(f"s_lshl_b32 s56, {s(sG)}, 16")
    a(f"s_lshl_b32 s57, {s(sJ)}, 12")
    a("s_add_u32 s56, s56, s57")
    a(f"s_lshl_b32 s57, {s(u_sgpr)}, 10")
    a("s_add_u32 s56, s56, s57")
    a(f"s_add_u32 s56, s56, {WS_O + r * 32768}")
    a(f"v_subrev_u32 {v(T + 13)}, {L_MISC}, {v(vL16)}")
    a.wait_lg(("fo", 8))
    a(f"v_cvt_f32_f64 {v(T + 8)}, {v(T + 48, 2)}")
    a(f"v_rcp_f32 {v(T + 8)}, {v(T + 8)}")
    a.wait_lg_all()
    for i in range(8):
        a(f"v_cvt_f32_f64 {v(T + i)}, {v(T + 32 + 2 * i, 2)}")
    for i in range(4):
        a(f"v_pk_mul_f32 {v(T + 2 * i, 2)}, {v(T + 2 * i, 2)}, {v(T + 8, 2)} op_sel_hi:[1,0]")
    for i in range(4):
        a(f"v_cvt_pk_bf16_f32 {v(T + 16 + i)}, {v(T + 2 * i)}, {v(T + 2 * i + 1)}")
    if OPT["sent"]:
        for i in range(4):
            a(f"v_min_u32 {v(T + 16 + i)}, -2, {v(T + 16 + i)}")
    a.vmem(f"buffer_store_dwordx4 {v(T + 16, 4)}, {v(T + 13)}, {s(SRD_WS, 4)}, s56 offen sc1")
    if OPT["sent"]:
        return
    a.wait_vm_all()
    arrive_rtn(C_F0 + 4 * r, T, 58)
    skip = a.newlabel("nofl")
    a("s_cmp_eq_u32 s58, 3")
    a(f"s_cbranch_scc0 {skip}")
    set_flag(1 + r, T)
    a.label(skip)


a.label("L_start")
a("s_cmp_ge_u32 s2, 256")
a("s_cbranch_scc1 L_end")
a("s_load_dwordx16 s[8:23], s[0:1], 0")
a("s_load_dwordx8 s[24:31], s[0:1], 64")
if OPT["stamps"]:
    a(f"{'s_memtime' if OPT['stamps'] == 2 else 's_memrealtime'} {s(sSTAMP, 2)}")
a("v_lshrrev_b32 v1, 6, v0")
a(f"v_and_b32 {v(vZ)}, 63, v0")
a(f"v_readfirstlane_b32 {s(sW)}, v1")
if OPT["map2"]:
    a("s_bfe_u32 s56, s2, 0x20001")
    a("s_bfe_u32 s57, s2, 0x30003")
    a(f"s_lshl_b32 {s(sG)}, s56, 3")
    a(f"s_add_u32 {s(sG)}, {s(sG)}, s57")
    a(f"s_and_b32 {s(sGQ)}, s57, 3")
    a("s_lshr_b32 s56, s2, 6")
    a("s_and_b32 s57, s2, 1")
    a(f"s_lshl_b32 {s(sJ)}, s56, 1")
    a(f"s_add_u32 {s(sJ)}, {s(sJ)}, s57")
else:
    a("s_and_b32 s56, s2, 7")
    a(f"s_bfe_u32 {s(sGQ)}, s2, 0x20003")
    a(f"s_lshl_b32 {s(sG)}, s56, 2")
    a(f"s_add_u32 {s(sG)}, {s(sG)}, {s(sGQ)}")
    a(f"s_lshr_b32 {s(sJ)}, s2, 5")
LANE = vZ
a(f"s_mov_b32 s62, {WS_E}")
a(f"s_cmp_ge_u32 {s(sW)}, 8")
a("s_cbranch_scc1 L_G")

XNT = " nt" if OPT["xnt"] else ""
sRB = 64
a(f"s_lshl_b32 s56, {s(sJ)}, 2")
a(f"s_xor_b32 s56, s56, {s(sW)}")
a("s_and_b32 s56, s56, 4")
a(f"s_lshr_b32 s57, {s(sJ)}, 1")
a(f"s_add_u32 s57, s57, {s(sW)}")
a("s_and_b32 s57, s57, 3")
a(f"s_or_b32 {s(sRB)}, s56, s57")
a(f"v_lshrrev_b32 v160, 3, {v(LANE)}")
a(f"v_and_b32 v161, 7, {v(LANE)}")
a("v_lshlrev_b32 v162, 10, v160")
a("v_lshl_add_u32 v162, v161, 4, v162")
a(f"s_lshl_b32 s56, {s(sG)}, 16")
a(f"s_lshl_b32 s57, {s(sRB)}, 13")
a("s_add_u32 s56, s56, s57")
a(f"v_lshlrev_b32 {v(vL4)}, 2, {v(LANE)}")
a(f"v_add_u32 {v(vL4)}, {L_MISC}, {v(vL4)}")
a("v_mov_b32 v108, 0")
a("s_waitcnt lgkmcnt(0)")
if OPT["kvst"] == 2:
    stamp(8)
srd(SRD_A, P_X, 2048 * 1024)
a(f"s_lshr_b32 s57, {s(sJ)}, 2")
a(f"s_lshr_b32 s58, {s(sW)}, 2")
a("s_or_b32 s63, s57, s58")
a("s_cbranch_scc1 L_A_nowkv")
a(f"s_cmp_lt_u32 {s(sJ)}, 2")
a(f"s_cselect_b32 {s(SRD_C)}, {s(P_WK)}, {s(P_WV)}")
a(f"s_cselect_b32 {s(SRD_C + 1)}, {s(P_WK + 1)}, {s(P_WV + 1)}")
a(f"s_mov_b32 {s(SRD_C + 2)}, 16384")
a(f"s_mov_b32 {s(SRD_C + 3)}, 0x20000")
a(f"v_bfe_u32 v96, {v(LANE)}, 3, 2")
a(f"v_lshrrev_b32 v97, 5, {v(LANE)}")
a("v_lshl_add_u32 v96, v96, 1, v97")
a("v_lshlrev_b32 v97, 4, v161")
a("v_lshl_add_u32 v96, v96, 7, v97")
a(f"s_lshl_b32 s57, {s(sW)}, 12")
a(f"s_add_u32 m0, s57, {L_P}")
a(f"s_lshr_b32 s58, {s(sW)}, 1")
a("s_lshl_b32 s58, s58, 13")
a(f"s_and_b32 s59, {s(sW)}, 1")
a("s_lshl_b32 s59, s59, 1")
if OPT["rot"]:
    a(f"s_add_u32 s59, s59, {s(sGQ)}")
for i in range(2):
    a("s_and_b32 s57, s59, 3")
    a("s_lshl_b32 s57, s57, 11")
    a("s_add_u32 s57, s57, s58")
    a(f"buffer_load_dwordx4 v96, {s(SRD_C, 4)}, s57 offen lds")
    a(f"buffer_load_dwordx4 v96, {s(SRD_C, 4)}, s57 offen offset:1024 lds")
    if i == 0:
        a("s_add_u32 m0, m0, 0x800")
        a("s_add_u32 s59, s59, 1")
a("s_branch L_A_first")
a.label("L_A_nowkv")
a(f"s_cmp_ge_u32 {s(sW)}, 4")
a("s_cbranch_scc0 L_A_first")
a(f"ds_write_b32 {v(vL4)}, v108 offset:{M_CNT}")
a("s_waitcnt lgkmcnt(0)")
a("s_barrier")
a.label("L_A_first")
for i in range(4):
    if OPT["rot"]:
        a(f"s_add_u32 s57, {s(sGQ)}, {i}")
        a("s_and_b32 s57, s57, 3")
        a("s_lshl_b32 s57, s57, 7")
        a(f"s_add_u32 s{68 + i}, s57, s56")
    else:
        a(f"s_add_u32 s{68 + i}, s56, {128 * i}")
    a(f"buffer_load_dwordx4 {v(4 * i, 4)}, v162, {s(SRD_A, 4)}, s{68 + i} offen{XNT}")
for i in range(4):
    a(f"buffer_load_dwordx4 {v(16 + 4 * i, 4)}, v162, {s(SRD_A, 4)}, s{68 + i} offen offset:512{XNT}")
if OPT["kvst"] == 2:
    stamp(9)
srd(SRD_WS, P_WS, WS_SIZE)
a(f"s_cmp_ge_u32 {s(sW)}, 4")
a("s_cbranch_scc1 L_A_hi0")
a("s_setprio 2")
a(f"buffer_load_dword v110, off, {s(SRD_WS, 4)}, s62 sc1")
a("s_barrier")
a("s_branch L_A_setup")
a.label("L_A_hi0")
a("s_setprio 1")
if OPT["prefetch_code"]:
    a(f"s_cmp_eq_u32 {s(sW)}, 4")
    a("s_cbranch_scc0 L_A_setup")
    a("s_getpc_b64 s[60:61]")
    a.label("L_pcref")
    a("s_lshr_b32 s57, s2, 3")
    a("s_mul_i32 s57, s57, 1280")
    a(f"v_min_u32 v96, 9, {v(LANE)}")
    a("v_lshl_add_u32 v96, v96, 7, s57")
    a("v_min_u32 v96, L_end-L_pcref, v96")
    a("global_load_dword v111, v96, s[60:61]")
a.label("L_A_setup")
a(f"v_lshlrev_b32 {v(vL16)}, 4, {v(LANE)}")
a(f"v_add_u32 {v(vL16)}, {L_MISC}, {v(vL16)}")
a(f"v_mov_b32 {v(vBIG)}, 0xdddd")
a("v_mov_b32 v109, 0")
a(f"s_and_b32 s57, {s(sRB)}, 3")
a("s_lshl_b32 s57, s57, 3")
a("v_add_u32 v163, s57, v160")
a("v_xor_b32 v163, v163, v161")
a("v_lshlrev_b32 v163, 4, v163")
a("v_lshrrev_b32 v96, 1, v161")
a("v_lshl_add_u32 v163, v96, 10, v163")
a("v_and_b32 v96, 1, v161")
a("v_lshl_add_u32 v163, v96, 9, v163")
a(f"s_lshr_b32 s57, {s(sRB)}, 2")
a("s_lshl_b32 s57, s57, 15")
a("v_add_u32 v163, s57, v163")
a(f"s_lshl_b32 s57, {s(sRB)}, 5")
a(f"s_add_u32 s57, s57, {L_MISC}")
a("v_lshl_add_u32 v162, v160, 2, s57")
a("s_mov_b32 s60, 0x3f803f80")
a("s_mov_b32 s61, 0x00003f80")
for i in range(4):
    a(f"v_mov_b32 v{96 + i}, 0")
a(f"v_mov_b32 v119, {L_MISC}")
a(f"v_lshrrev_b32 v112, 4, {v(LANE)}")
a(f"s_and_b32 s59, {s(sRB)}, 3")
a("s_lshl_b32 s59, s59, 3")
a("v_add_u32 v114, s59, v161")
a("v_xor_b32 v114, v114, v112")
a("v_lshrrev_b32 v115, 1, v112")
a("v_and_b32 v116, 1, v112")
a("v_lshlrev_b32 v117, 10, v115")
a("v_lshl_add_u32 v117, v116, 9, v117")
a(f"s_lshr_b32 s59, {s(sRB)}, 2")
a("s_lshl_b32 s59, s59, 15")
a("v_add_u32 v117, s59, v117")
a("v_lshl_add_u32 v120, v114, 4, v117")
a("v_xor_b32 v114, 4, v114")
a("v_lshl_add_u32 v121, v114, 4, v117")
a(f"s_mov_b32 s59, {L_P}")
a(f"v_lshl_add_u32 v122, {v(LANE)}, 3, s59")
a(f"s_lshl_b32 s59, {s(sRB)}, 5")
a(f"s_add_u32 s59, s59, {L_MISC + M_RSTD}")
a(f"s_lshl_b32 s72, {s(sG)}, 11")
a(f"s_lshl_b32 s73, {s(sG)}, 2")
a(f"s_add_u32 s73, s73, {s(sJ)}")
a("s_lshl_b32 s73, s73, 7")
a(f"s_add_u32 s73, s73, {WS_KVF}")
a(f"s_cmp_lt_u32 {s(sJ)}, 2")
a("s_cbranch_scc0 L_A_sv")
a("v_lshl_add_u32 v117, v161, 2, s59")
a("v_lshlrev_b32 v118, 9, v116")
a("v_lshl_add_u32 v118, v161, 4, v118")
a("v_lshl_add_u32 v118, v115, 3, v118")
a(f"s_lshr_b32 s59, {s(sRB)}, 2")
a("s_lshl_b32 s59, s59, 10")
a("s_add_u32 s72, s72, s59")
a(f"s_and_b32 s59, {s(sRB)}, 3")
a("s_lshl_b32 s59, s59, 7")
a("s_add_u32 s72, s72, s59")
if WS_K:
    a(f"s_add_u32 s72, s72, {WS_K}")
a("s_branch L_A_sk")
a.label("L_A_sv")
a("v_lshl_add_u32 v117, v116, 4, s59")
a(f"v_and_b32 v118, 15, {v(LANE)}")
a("v_lshlrev_b32 v118, 4, v118")
a("v_lshl_add_u32 v118, v112, 3, v118")
a(f"s_lshl_b32 s59, {s(sRB)}, 8")
a("s_add_u32 s72, s72, s59")
a(f"s_add_u32 s72, s72, {WS_V}")
a.label("L_A_sk")
a("s_cmp_eq_u32 s63, 0")
a("s_cbranch_scc0 L_A_now")
a("s_waitcnt vmcnt(9)")
arrive(C_WKV)
spin_lds(C_WKV, 4, 115, sleep=0)
for st in range(16):
    for f in range(2):
        a(f"ds_read_b64_tr_b16 {v(32 + 4 * st + 2 * f, 2)}, v122 offset:{1024 * st + 512 * f}")
a.label("L_A_now")
a(f"s_cmp_ge_u32 {s(sW)}, 4")
a("s_cbranch_scc0 L_A_w1")
a("s_waitcnt vmcnt(0)")
a.label("L_A_w1")
a("s_waitcnt vmcnt(1)")
a("s_mov_b32 s62, 0x3f800000")
stamp(1)
for i in range(32):
    a(f"v_dot2c_f32_bf16 v{96 + i % 4}, s60, v{i}")
a("v_add_f32 v96, v96, v97")
a("v_add_f32 v98, v98, v99")
a("v_add_f32 v96, v96, v98")


def red8(r):
    a(f"v_add_f32_dpp {v(r)}, {v(r)}, {v(r)} quad_perm:[1,0,3,2] row_mask:0xf bank_mask:0xf")
    a(f"v_add_f32_dpp {v(r)}, {v(r)}, {v(r)} quad_perm:[2,3,0,1] row_mask:0xf bank_mask:0xf")
    a(f"v_add_f32_dpp {v(r)}, {v(r)}, {v(r)} row_half_mirror row_mask:0xf bank_mask:0xf")


red8(96)
a(f"v_mul_f32 v97, {fbits(-1.0 / 512)}, v96")
a("v_cvt_pk_bf16_f32 v98, v97, v97")
a("v_lshlrev_b32 v98, 16, v98")
a("v_sub_f32 v99, v97, v98")
for i in range(32 + 3):
    if i < 32:
        t = 100 + 2 * (i % 4)
        a(f"v_dot2_f32_bf16 v{t}, v{i}, s61, v98")
        a(f"v_dot2_f32_bf16 v{t + 1}, v{i}, s62, v98")
    k = i - 2
    if 0 <= k < 32:
        t = 100 + 2 * (k % 4)
        a(f"v_cvt_pk_bf16_f32 v{k}, v{t}, v{t + 1}")
    k = i - 3
    if 0 <= k < 32:
        a(f"v_dot2c_f32_bf16 v{108 + k % 2}, v{k}, v{k}")
        if k % 4 == 3:
            a.lds(f"ds_write_b128 v163, {v(k - 3, 4)} offset:{4096 * (k // 4)}")


def kv_reads(st):
    a.lds(f"ds_read_b128 {v(124 + 4 * (st % 9), 4)}, v{120 + st % 2} offset:{2048 * st}", ("kv", st))


a("s_cmp_eq_u32 s63, 0")
a("s_cbranch_scc0 L_A_nox")
a.lg_reset()
for st in range(9):
    kv_reads(st)
a.label("L_A_nox")
a("v_add_f32 v108, v108, v109")
red8(108)
a(f"v_mul_f32 v108, {fbits(1.0 / 512)}, v108")
a("v_fma_f32 v108, -v99, v99, v108")
a("v_max_f32 v108, 0, v108")
a("v_cvt_pk_bf16_f32 v108, v108, v108")
a("v_lshlrev_b32 v108, 16, v108")
a(f"v_add_f32 v108, {fbits(1e-5)}, v108")
a("v_cvt_pk_bf16_f32 v108, v108, v108")
a("v_lshlrev_b32 v108, 16, v108")
a("v_sqrt_f32 v108, v108")
a("v_cvt_pk_bf16_f32 v109, v108, 0")
a("v_lshlrev_b32 v108, 16, v109")
a("v_rcp_f32 v108, v108")
a.lds(f"ds_write_b32 v162, v109 offset:{M_DEN}")
a.lds(f"ds_write_b32 v162, v108 offset:{M_RSTD}")
a(f"s_cmp_ge_u32 {s(sW)}, 4")
a("s_cbranch_scc1 L_A_hi2")

a("s_waitcnt vmcnt(0)")
a(f"v_readfirstlane_b32 {s(sTAG)}, v110")
a(f"s_add_u32 {s(sTAG)}, {s(sTAG)}, 1")
a(f"v_mov_b32 v18, {s(sTAG)}")
a.lds(f"ds_write_b32 v119, v18 offset:{C_TAG}")
arrive(C_XC)
kv_lg = list(a.lg)
stamp(2)
a(f"s_cmp_lt_u32 {s(sJ)}, 4")
a("s_cbranch_scc0 L_A_kvdone")


def kv_body(isv):
    a.lg = list(kv_lg)
    a.lds("ds_read_b128 v[20:23], v117" if isv else "ds_read_b32 v20, v117", "rs")
    for st in range(16):
        a.wait_lg(("kv", st))
        xf, wf = 124 + 4 * (st % 9), 32 + 4 * st
        A_, B_ = (xf, wf) if isv else (wf, xf)
        acc = 4 * (st % 2)
        c = "0" if st < 2 else v(acc, 4)
        a(f"v_mfma_f32_16x16x32_bf16 {v(acc, 4)}, {v(A_, 4)}, {v(B_, 4)}, {c}")
        if st + 9 < 16:
            kv_reads(st + 9)
    a("v_pk_add_f32 v[0:1], v[0:1], v[4:5]")
    a("v_pk_add_f32 v[2:3], v[2:3], v[6:7]")


a(f"s_cmp_lt_u32 {s(sJ)}, 2")
a("s_cbranch_scc0 L_kv_v")
kv_body(False)
a("s_mov_b32 s58, 0x00ff00ff")
a("s_mov_b32 s59, 0x00ff00ff")
a("v_pk_mul_f32 v[0:1], v[0:1], v[20:21] op_sel_hi:[1,0]")
a("v_pk_mul_f32 v[2:3], v[2:3], v[20:21] op_sel_hi:[1,0]")
a("v_cvt_pk_bf16_f32 v4, v0, v1")
a("v_cvt_pk_bf16_f32 v5, v2, v3")
a("s_mov_b64 exec, s[58:59]")
a(f"buffer_store_dwordx2 v[4:5], v118, {s(SRD_WS, 4)}, s72 offen sc1")
a("s_mov_b64 exec, -1")
a("v_dot2_f32_bf16 v6, v4, v4, 0")
a("v_dot2_f32_bf16 v6, v5, v5, v6")
a("v_mov_b32 v7, v6")
a("v_permlane32_swap_b32 v6, v7")
a("v_add_f32 v6, v6, v7")
a("s_branch L_kv_pub")
a.label("L_kv_v")
kv_body(True)
a("v_pk_mul_f32 v[0:1], v[0:1], v[20:21]")
a("v_pk_mul_f32 v[2:3], v[2:3], v[22:23]")
a("v_cvt_pk_bf16_f32 v4, v0, v1")
a("v_cvt_pk_bf16_f32 v5, v2, v3")
a("s_mov_b32 exec_hi, 0")
a(f"buffer_store_dwordx2 v[4:5], v118, {s(SRD_WS, 4)}, s72 offen sc1")
a("s_mov_b64 exec, -1")
a("v_dot2_f32_bf16 v6, v4, v4, 0")
a("v_dot2_f32_bf16 v6, v5, v5, v6")
a(f"v_mov_b32 v7, 0x7f800000")
a(f"v_cmp_ge_f32 vcc, {fbits(2.0 ** 100)}, v6")
a("v_cndmask_b32_e64 v6, v7, 0, vcc")
a.label("L_kv_pub")
a(f"ds_max_u32 v119, v6 offset:{C_MK}")
a(f"v_mov_b32 v4, {s(sTAG)}")
if OPT["kvst"] == 1:
    stamp(8)
a("s_mov_b64 exec, 1")
a("s_waitcnt vmcnt(0)")
if OPT["kvst"] == 1:
    stamp(9)
a(f"ds_inc_rtn_u32 v6, v119, {v(vBIG)} offset:{C_KV}")
a(f"ds_read_b32 v5, v119 offset:{C_MK}")
a.wait_lg_all()
a("v_cmp_eq_u32 vcc, 3, v6")
a("s_cbranch_vccz L_kv_nofl")
a(f"buffer_store_dwordx2 v[4:5], off, {s(SRD_WS, 4)}, s73 sc1")
a.label("L_kv_nofl")
a("s_mov_b64 exec, -1")
a.label("L_A_kvdone")
stamp(3)
a("s_setprio 0")
a("s_branch L_A_noq")

a.label("L_A_hi2")
a(f"s_and_b32 s57, {s(sW)}, 1")
a(f"s_bfe_u32 s58, {s(sW)}, 0x10001")
a("s_lshl_b32 s59, s58, 15")
xc_addrs(80, 84, 59, 96, 97, LANE)
tr_swz(88, 96, 97, 1024, LANE)
a("s_lshl_b32 s60, s57, 6")
a("v_xor_b32 v88, s60, v88")
a(f"v_add_u32 v88, {L_W}, v88")
a("s_lshl_b32 s59, s58, 7")
a(f"v_and_b32 v90, 31, {v(LANE)}")
a("v_lshl_add_u32 v90, v90, 2, s59")
a(f"v_add_u32 v90, {L_MISC}, v90")
if OPT["gst"]:
    stamp(2)
arrive(C_XC)
spin_lds(C_XC, 12, 92, sleep=0)
if not OPT["gst"]:
    stamp(2)
a.lds(f"ds_read_b32 v92, v90 offset:{M_RSTD}")
a.lds(f"ds_read_b32 v94, {v(vL4)} offset:{C_TAG}")
QD = 4


def q_reads(t):
    f0 = 8 * (t % (QD + 1))
    a.lds(f"ds_read_b128 {v(f0 + 4, 4)}, v{80 + t % 4} offset:{1024 * t}", ("q", t))
    for f in range(2):
        a.lds(f"ds_read_b64_tr_b16 {v(f0 + 2 * f, 2)}, v88 offset:{2048 * t + 512 * f}", ("q", t))


for t in range(QD):
    q_reads(t)
for t in range(32):
    if t + QD < 32:
        q_reads(t + QD)
    a.wait_lg(("q", t))
    f0 = 8 * (t % (QD + 1))
    mfma32(96, f0, f0 + 4, None if t == 0 else 96)
arrive(C_QL)
stamp(3)
a(f"v_readfirstlane_b32 {s(sTAG)}, v94")
a(f"v_mul_f32 v92, {fbits(0.25 * LOG2E)}, v92")
a("v_mov_b32 v16, 0")
a("v_mov_b32 v17, 0")
a(f"v_mov_b32 v18, {L_MISC}")
a("s_lshl_b32 s59, s58, 12")
a("s_lshl_b32 s60, s57, 11")
a("s_add_u32 s59, s59, s60")
a(f"v_add_u32 v13, s59, {v(vL16)}")
for i in range(8):
    a(f"v_pk_mul_f32 {v(96 + 2 * i, 2)}, {v(96 + 2 * i, 2)}, v[92:93] op_sel_hi:[1,0]")
for i in range(8):
    a(f"v_cvt_pk_bf16_f32 {v(144 + i)}, {v(96 + 2 * i)}, {v(97 + 2 * i)}")
    if i % 4 == 3:
        a.lds(f"ds_write_b128 v13, {v(141 + i, 4)} offset:{QF + 1024 * (i // 4)}")
for i in range(4):
    a(f"v_dot2c_f32_bf16 v16, v{144 + i}, v{144 + i}")
    a(f"v_dot2c_f32_bf16 v17, v{148 + i}, v{148 + i}")
a("v_max_u32 v16, v16, v17")
a.lds(f"ds_max_u32 v18, v16 offset:{C_MQ}")
arrive(C_Q2)
a.label("L_A_noq")
stamp(4)

vK, vV, vS, vO, vQ = 0, 32, 96, 128, 160
a(f"s_mov_b32 {s(sONES)}, 0x3f803f80")
a(f"s_mov_b32 {s(sONES + 1)}, 0x3f803f80")
a("s_waitcnt vmcnt(0)")
for i in range(32):
    a(f"v_pk_mov_b32 {v(vV + 2 * i, 2)}, {s(sONES, 2)}, {s(sONES, 2)}")
for i in range(9):
    a(f"v_mov_b32 {v(vO + i)}, 0")
    a(f"v_mov_b32 {v(vO + 16 + i)}, 0")
a(f"s_mov_b32 s57, {L_MISC}")
a(f"v_lshl_add_u32 {v(vL4)}, {v(LANE)}, 3, s57")
vKA = 158
a(f"v_lshlrev_b32 {v(vKA)}, 4, {v(LANE)}")
a(f"v_lshrrev_b32 v97, 5, {v(LANE)}")
a(f"v_and_b32 v98, 15, {v(LANE)}")
a("v_lshlrev_b32 v97, 8, v97")
a(f"v_lshl_add_u32 {v(vKA + 1)}, v98, 4, v97")
sKR = 65
if OPT["rot"]:
    a(f"s_lshl_b32 s57, {s(sGQ)}, 1")
    a(f"s_add_u32 s57, s57, {s(sJ)}")
    a(f"s_add_u32 s57, s57, {s(sW)}")
    a(f"s_and_b32 {s(sKR)}, s57, 7")
else:
    a(f"s_mov_b32 {s(sKR)}, {s(sW)}")
a("s_setprio 3")
a(f"s_cmp_ge_u32 {s(sW)}, 4")
a("s_cbranch_scc1 L_A_nopoll")
for i in range(4):
    a(f"v_mov_b32 v{104 + i}, 0")
a("v_mov_b32 v108, 0xff800000")
a(f"s_lshl_b32 s59, {s(sW)}, 11")
a(f"v_add_u32 v109, s59, {v(vL16)}")
a(f"s_mov_b32 s57, {L_MISC}")
a(f"v_lshl_add_u32 v110, {v(LANE)}, 2, s57")
spin_lds(C_XC, 12, 99)
for q in range(2):
    a.lds(f"ds_write_b128 v109, v[104:107] offset:{P0 + 8192 + 1024 * q}")
a(f"s_cmp_eq_u32 {s(sW)}, 0")
a("s_cbranch_scc0 L_A_z2")
for q in range(4):
    a(f"ds_write_b32 v110, v108 offset:{MROW + 256 * q}")
a.label("L_A_z2")
a(f"s_lshl_b32 s59, {s(sW)}, 12")
a(f"v_add_u32 v109, s59, {v(vL16)}")
if not OPT["zlate"]:
    spin_lds(C_QL, 4, 99)
    for q in range(4):
        a.lds(f"ds_write_b128 v109, v[104:107] offset:{L_W - L_MISC + 1024 * q}")
a(f"v_and_b32 v98, 15, {v(LANE)}")
a(f"v_bfe_u32 v99, {v(LANE)}, 4, 1")
a(f"v_lshl_add_u32 v99, v99, 2, {s(sKR)}")
a("v_and_b32 v99, 7, v99")
a("v_lshlrev_b32 v98, 7, v98")
a("v_lshl_add_u32 v98, v99, 11, v98")
a(f"s_mov_b32 s57, {WS_KVF}")
poll_flags("s57", 32, 100, 98, wide=True)
a.label("L_A_nopoll")
stamp(5)
a(f"s_lshl_b32 s57, {s(sKR)}, 13")
if WS_K:
    a(f"s_add_u32 s57, s57, {WS_K}")
a(f"s_add_u32 s58, s57, {WS_V - WS_K}")
a("s_add_u32 s59, s57, 0x1000")
a("s_add_u32 s60, s58, 0x1000")
a("s_mov_b32 s62, 0x0000ffff")
a("s_mov_b32 s63, 0x0000ffff")
a.vm_reset()


def kv_loads(T):
    a.vmem(f"buffer_load_dwordx4 {v(vK + 4 * T, 4)}, {v(vKA)}, {s(SRD_WS, 4)}, s{57 if T < 4 else 59} offen offset:{1024 * (T % 4)} sc1", ("K", T))
    a("s_mov_b64 exec, s[62:63]")
    for u in range(2):
        b = 2 * T + u
        a.vmem(f"buffer_load_dwordx4 {v(vV + 4 * b, 4)}, {v(vKA + 1)}, {s(SRD_WS, 4)}, s{58 if b < 8 else 60} offen offset:{512 * (b % 8)} sc1", ("V", b))
    a("s_mov_b64 exec, -1")


NPRE = OPT["kvpre"]
a(f"s_cmp_ge_u32 {s(sW)}, 4")
a("s_cbranch_scc0 L_A_z4")
spin_lds(C_KVL, 8 if OPT["gfirst"] else 4, 99)
for T in range(8):
    kv_loads(T)
a.vm_reset()
arrive(C_KVL)
a("s_branch L_A_z3")
a.label("L_A_z4")
for T in range(NPRE):
    kv_loads(T)
if NPRE == 8:
    arrive(C_KVL)
a(f"v_mov_b32 v98, {L_MISC}")
a("s_mov_b32 exec_hi, 0")
a.lds(f"ds_max_u32 v98, v101 offset:{C_MKALL}")
a("s_mov_b64 exec, -1")
if OPT["zlate"]:
    spin_lds(C_QL, 4, 99, sleep=0)
    for q in range(4):
        a.lds(f"ds_write_b128 v109, v[104:107] offset:{L_W - L_MISC + 1024 * q}")
arrive(C_Q2)
a.label("L_A_z3")
spin_lds(C_Q2, 8, 99, sleep=0)
a.lds(f"ds_read_b32 v98, {v(vL4)} offset:{C_MQ}")
a.lds(f"ds_read_b32 v99, {v(vL4)} offset:{C_MKALL}")
a.lds(f"ds_read_b128 {v(vQ, 4)}, {v(vL16)} offset:{QF}")
a.wait_lg_all()
a("v_readfirstlane_b32 s66, v98")
a("v_readfirstlane_b32 s67, v99")
a("v_mov_b32 v98, s66")
a("v_mul_f32 v98, s67, v98")
a(f"v_cmp_ge_f32 vcc, {fbits(1024.0 if not OPT['force_fallback'] else -1.0)}, v98")
a("s_cbranch_vccz L_fallback")
a(f"v_mov_b32 {v(vZ)}, 0")
a(f"s_mov_b64 {s(sONES, 2)}, 0")

vm_saved = list(a.vm)


def qk(dst, T):
    a.wait_vm(("K", T))
    mfma32(dst, vK + 4 * T, vQ, None)


def pv(o, b, src):
    a.wait_vm(("V", b))
    a(f"v_smfmac_f32_32x32x32_bf16 {v(o, 16)}, {v(vV + 4 * b, 4)}, {v(src, 8)}, {v(vBIG)}")


def osum_add(qt, i):
    o = vO + 16 * (qt % 2)
    t = o + 10 + 2 * (i % 3)
    a(f"v_cvt_f64_f32 {v(t, 2)}, {v(o + i)}")
    a.lds(f"ds_add_f64 {v(vL4)}, {v(t, 2)} offset:{OSUM + qt * 4608 + 512 * i}", ("os", qt))


FAIR = {1: {0: 2, 3: 1, 6: 0}, 2: {0: 3, 2: 2, 4: 1, 6: 0}, 3: {0: 2, 4: 1}, 4: {0: 2, 2: 1, 5: 0}, 0: {0: 0}}[OPT["fair"]]
qk(vS, 0)
stamp(6)
for qt in range(8):
    o = vO + 16 * (qt % 2)
    if OPT["qtst"] and qt in (1, 2, 4, 6):
        stamp({1: 1, 2: 2, 4: 3, 6: 4}[qt])
    if qt in FAIR:
        a(f"s_setprio {FAIR[qt]}")
    for T in range(8):
        n = qt * 8 + T
        S = vS + 16 * (n % 2)
        Sn = vS + 16 * (1 - n % 2)
        e = lambda i: a(f"v_exp_f32 {v(S + i)}, {v(S + i)}")
        e(0); e(1)
        if n > 0:
            if T == 0:
                pv(vO + 16 * ((qt - 1) % 2), 15, Sn + 8)
            else:
                pv(o, 2 * T - 1, Sn + 8)
        e(2); e(3); e(4)
        if n < 63:
            if T == 7:
                a.wait_lg(("Q", qt + 1))
            qk(Sn, (T + 1) % 8)
        if T == 6 and qt < 7:
            a.lds(f"ds_read_b128 {v(vQ, 4)}, {v(vL16)} offset:{QF + 1024 * (qt + 1)}", ("Q", qt + 1))
        if qt == 0 and T + NPRE < 8:
            skip = a.newlabel("nold")
            a(f"s_cmp_ge_u32 {s(sW)}, 4")
            a(f"s_cbranch_scc1 {skip}")
            kv_loads(T + NPRE)
            if T + NPRE == 7:
                arrive(C_KVL)
            a.label(skip)
        extra = {}
        if T == 0 and qt > 0:
            extra = {13: (0, 1, 2), 14: (3, 4)}
        elif T == 1 and qt > 0:
            extra = {6: (5, 6), 8: (7, 8)}
        for i in range(5, 16):
            if i == OPT["pvpos"]:
                pv(o, 2 * T, S)
            e(i)
            for k in extra.get(i, ()):
                osum_add(qt - 1, k)
        if T == 3 and 0 < qt < 7:
            op = vO + 16 * ((qt - 1) % 2)
            if OPT["zmfma"]:
                a(f"v_mfma_f32_32x32x2_f32 {v(op, 16)}, {v(vZ)}, {v(vZ)}, 0")
            else:
                for i in range(5):
                    a(f"v_pk_mov_b32 {v(op + 2 * i, 2)}, {s(sONES, 2)}, {s(sONES, 2)}")
        if T == 3 and qt == 4:
            a.wait_lg(("os", 3))
            arrive(C_O0)
pv(vO + 16, 15, vS + 16 + 8)
for i in range(9):
    osum_add(7, i)
a.wait_lg_all()
arrive(C_O1)
a.label("L_A_attn_done")
a("s_setprio 3")
stamp(7)
a(f"s_cmp_ge_u32 {s(sW)}, 4")
a("s_cbranch_scc1 L_A_end")
if not OPT["fin0g"]:
    finalize(0, sW)
if not OPT["kvst"]:
    stamp(8)
finalize(1, sW)
if not OPT["kvst"]:
    stamp(9)
a.label("L_A_end")
stamps_out(10)
a("s_endpgm")

a.label("L_fallback")
a(f"s_cmp_ge_u32 {s(sW)}, 4")
a("s_cbranch_scc1 L_fb0")
for T in range(NPRE, 8):
    kv_loads(T)
if NPRE < 8:
    arrive(C_KVL)
a.label("L_fb0")
a("s_waitcnt vmcnt(0)")
a.vm_reset()
a.lg_reset()
a(f"v_and_b32 v144, 31, {v(LANE)}")
a("v_lshlrev_b32 v144, 2, v144")
a(f"v_add_u32 v144, {L_MISC}, v144")
a(f"v_mov_b32 v145, {v(vL16)}")
a("s_mov_b32 s57, 0")
a.label("L_fb1")
a(f"ds_read_b128 {v(vQ, 4)}, v145 offset:{QF}")
a("v_mov_b32 v146, 0xff800000")
a("s_waitcnt lgkmcnt(0)")
for T in range(8):
    mfma32(vS, vK + 4 * T, vQ, None)
    for i in range(8):
        a(f"v_max3_f32 v146, v146, {v(vS + 2 * i)}, {v(vS + 2 * i + 1)}")
a(f"ds_max_f32 v144, v146 offset:{MROW}")
a("v_add_u32 v144, 128, v144")
a("v_add_u32 v145, 1024, v145")
a("s_add_u32 s57, s57, 1")
a("s_cmp_lt_u32 s57, 8")
a("s_cbranch_scc1 L_fb1")
a.wait_lg_all()
arrive(C_MX)
spin_lds(C_MX, 8, 146)
a("v_subrev_u32 v144, 1024, v144")
a(f"v_mov_b32 v145, {v(vL16)}")
a(f"v_mov_b32 v147, {v(vL4)}")
a("s_mov_b32 s57, 0")
a.label("L_fb2")
a(f"ds_read_b128 {v(vQ, 4)}, v145 offset:{QF}")
a(f"ds_read_b32 v146, v144 offset:{MROW}")
for i in range(16):
    a(f"v_mov_b32 {v(vO + i)}, 0")
a("s_waitcnt lgkmcnt(0)")
for T in range(8):
    mfma32(vS, vK + 4 * T, vQ, None)
    for i in range(16):
        a(f"v_sub_f32 {v(vS + i)}, {v(vS + i)}, v146")
    for i in range(16):
        a(f"v_exp_f32 {v(vS + i)}, {v(vS + i)}")
    for u in range(2):
        a(f"v_smfmac_f32_32x32x32_bf16 {v(vO, 16)}, {v(vV + 4 * (2 * T + u), 4)}, {v(vS + 8 * u, 8)}, {v(vBIG)}")
for i in range(9):
    a(f"v_cvt_f64_f32 {v(148 + 2 * (i % 4), 2)}, {v(vO + i)}")
    a(f"ds_add_f64 v147, {v(148 + 2 * (i % 4), 2)} offset:{OSUM + 512 * i}")
a("v_add_u32 v144, 128, v144")
a("v_add_u32 v145, 1024, v145")
a("v_add_u32 v147, 4608, v147")
a("s_waitcnt lgkmcnt(0)")
a("s_add_u32 s57, s57, 1")
a("s_cmp_eq_u32 s57, 4")
a("s_cbranch_scc0 L_fb2n")
arrive(C_O0)
a.label("L_fb2n")
a("s_cmp_lt_u32 s57, 8")
a("s_cbranch_scc1 L_fb2")
arrive(C_O1)
a.lg_reset()
a("s_branch L_A_attn_done")

a.label("L_G")
sU, sP, sKH, sNT = 64, 65, 66, 67
a(f"s_sub_u32 {s(sU)}, {s(sW)}, 8")
a(f"s_lshr_b32 {s(sP)}, {s(sU)}, 1")
a(f"s_and_b32 {s(sKH)}, {s(sU)}, 1")
a(f"s_max_u32 s56, {s(sJ)}, 1")
a("s_sub_u32 s56, s56, 1")
a("s_min_u32 s56, s56, 3")
a(f"s_mul_i32 {s(sNT)}, {s(sJ)}, 5")
a(f"s_add_u32 {s(sNT)}, {s(sNT)}, s56")
a(f"s_mul_i32 s56, {s(sP)}, 3")
a(f"s_add_u32 {s(sNT)}, {s(sNT)}, s56")
sN3 = 68
a(f"s_sub_u32 s56, {s(sJ)}, 1")
a("s_cmp_lt_u32 s56, 3")
a(f"s_cselect_b32 {s(sN3)}, 1, 0")
a(f"s_cmp_eq_u32 {s(sP)}, 0")
a(f"s_cselect_b32 {s(sN3)}, 1, {s(sN3)}")
vXA, vXB, vTR, vDMA = 136, 140, 144, 146
sRING, sW1 = 69, 70
a(f"s_mul_i32 {s(sRING)}, {s(sU)}, 12288")
a(f"s_add_u32 {s(sRING)}, {s(sRING)}, {L_GR}")
a(f"s_mul_i32 {s(sW1)}, {s(sKH)}, {256 * 2752}")
a(f"s_lshl_b32 s56, {s(sNT)}, 6")
a(f"s_add_u32 {s(sW1)}, {s(sW1)}, s56")
if OPT["rot"]:
    a(f"s_mul_i32 s56, {s(sGQ)}, {64 * 2752}")
    a(f"s_add_u32 {s(sW1)}, {s(sW1)}, s56")
a("s_waitcnt lgkmcnt(0)")
srd(SRD_WS, P_WS, WS_SIZE)
a("s_barrier")
srd(SRD_A, P_W1, 512 * 2752)
srd(SRD_B, P_B1, 2752)
AF = lambda st, t: 96 + 12 * st + 4 * t
BF = lambda st, sl: 120 + 8 * st + 4 * sl
a(f"v_lshlrev_b32 v150, 1, {v(LANE)}")
a(f"v_cmp_gt_u32 vcc, 32, {v(LANE)}")
a("v_mov_b32 v151, 0x10000")
a("v_cndmask_b32 v150, v151, v150, vcc")
a(f"s_lshl_b32 s56, {s(sNT)}, 6")
for t in range(3):
    a(f"buffer_load_ushort {v(AF(1, t))}, v150, {s(SRD_B, 4)}, s56 offen offset:{64 * t}")
a(f"v_lshlrev_b32 {v(vL4)}, 2, {v(LANE)}")
a(f"v_lshlrev_b32 {v(vL16)}, 4, {v(LANE)}")
a(f"v_add_u32 {v(vL4)}, {L_MISC}, {v(vL4)}")
a(f"v_add_u32 {v(vL16)}, {L_MISC}, {v(vL16)}")
a(f"v_mov_b32 {v(vBIG)}, 0xdddd")
a(f"s_mul_i32 s56, {s(sKH)}, 0xc000")
xc_addrs(vXA, vXB, 56, 150, 151, LANE)
for t in range(3):
    for i in range(1, 4):
        a(f"v_mov_b32 {v(AF(1, t) + i)}, 0")
for i in range(0, 4):
    a(f"v_mov_b32 {v(BF(1, 0) + i)}, 0")
a(f"s_lshl_b32 s56, {s(sU)}, 12")
a(f"v_add_u32 v150, s56, {v(vL16)}")
for q in range(3):
    a(f"ds_write_b128 v150, {v(BF(1, 0), 4)} offset:{P0 + 16384 + 1024 * q}")
a(f"s_cmp_eq_u32 {s(sU)}, 3")
a("s_cbranch_scc1 L_G_z")
a(f"ds_write_b128 v150, {v(BF(1, 0), 4)} offset:{P0 + 16384 + 3072}")
a.label("L_G_z")
srd(SRD_D, P_WQ, 512 * 1024)
row128(149, 150, 1024, LANE)
a(f"s_lshl_b32 s57, {s(sU)}, 14")
a(f"s_add_u32 m0, s57, {L_W}")
a(f"s_lshl_b32 s58, {s(sP)}, 18")
a(f"s_lshl_b32 s57, {s(sJ)}, 7")
a("s_add_u32 s58, s58, s57")
a(f"s_lshl_b32 s59, {s(sKH)}, 1")
if OPT["rot"]:
    a(f"s_add_u32 s59, s59, {s(sGQ)}")
if not OPT["wqe"]:
    a("s_waitcnt vmcnt(0)")
for b in range(2):
    a("s_and_b32 s56, s59, 3")
    a("s_lshl_b32 s56, s56, 16")
    a("s_add_u32 s56, s56, s58")
    for i in range(8):
        a(f"buffer_load_dwordx4 v149, {s(SRD_D, 4)}, s56 offen lds")
        if 8 * b + i < 15:
            a("s_add_u32 m0, m0, 0x400")
            a("s_add_u32 s56, s56, 0x2000")
    if b == 0:
        a("s_add_u32 s59, s59, 1")
if OPT["w1l2"] == 2:
    a.comment("members 4-7 pull w1 into their XCD's L2, first-needed rows first")
    a(f"s_cmp_ge_u32 {s(sJ)}, 4")
    a("s_cbranch_scc0 L_G_nopf")
    a("s_lshr_b32 s56, s2, 3")
    a("s_and_b32 s57, s56, 1")
    a("s_lshl_b32 s57, s57, 3")
    a("s_bfe_u32 s56, s56, 0x30001")
    a("s_lshl_b32 s56, s56, 6")
    a("s_add_u32 s56, s56, s57")
    a(f"s_lshl_b32 s57, {s(sU)}, 1")
    a("s_add_u32 s56, s56, s57")
    a("s_mul_i32 s56, s56, 2752")
    a(f"v_lshlrev_b32 v155, 7, {v(LANE)}")
    a("s_mov_b32 exec_hi, 0x7ff")
    for k in range(4):
        a(f"buffer_load_dword v156, v155, {s(SRD_A, 4)}, s56 offen")
        a(f"s_add_u32 s56, s56, {16 * 2752}")
    a("s_mov_b64 exec, -1")
    a("s_waitcnt vmcnt(4)")
    a("s_branch L_G_pf")
    a.label("L_G_nopf")
if OPT["w1l2"] == 3:
    a.comment("the workgroups that share this member's w1 slab each pull a different part of it into L2")
    npf = 1 if OPT["map2"] else 2
    a(f"s_max_u32 s56, {s(sJ)}, 1")
    a("s_sub_u32 s56, s56, 1")
    a("s_min_u32 s56, s56, 3")
    a(f"s_mul_i32 s57, {s(sJ)}, 5")
    a("s_add_u32 s56, s56, s57")
    a("s_lshl_b32 s56, s56, 6")
    a(f"s_bfe_u32 s57, s2, {'0x30003' if OPT['map2'] else '0x20003'}")
    a(f"s_mul_i32 s57, s57, {64 * npf * 2752}")
    a("s_add_u32 s56, s56, s57")
    a(f"s_mul_i32 s57, {s(sU)}, {16 * 2752}")
    a("s_add_u32 s56, s56, s57")
    a(f"v_lshrrev_b32 v155, 2, {v(LANE)}")
    a("v_mul_u32_u24 v155, 2752, v155")
    a(f"v_and_b32 v156, 3, {v(LANE)}")
    a("v_lshl_add_u32 v155, v156, 7, v155")
    for k in range(npf):
        a(f"buffer_load_dword v156, v155, {s(SRD_A, 4)}, s56 offen")
        a(f"s_add_u32 s56, s56, {64 * 2752}")
    a(f"s_waitcnt vmcnt({npf})")
else:
    a("s_waitcnt vmcnt(0)")
a.label("L_G_pf")


def w1_dma(t, nt):
    for k in range(nt):
        a(f"s_add_u32 m0, {s(sRING)}, {(t % 4) * 3072 + k * 1024}")
        if k == nt - 1:
            a(f"s_add_u32 s57, {s(sW1)}, {16 * 2752}")
        a.vmem(f"buffer_load_dwordx4 {v(vDMA + k)}, {s(SRD_A, 4)}, {s(sW1)} offen lds", ("w1", t))
    if OPT["rot"] and t in (3, 7, 11):
        a(f"s_cmp_eq_u32 {s(sGQ)}, {3 - t // 4}")
        a(f"s_cselect_b32 s58, {256 * 2752}, 0")
        a(f"s_sub_u32 {s(sW1)}, s57, s58")
    else:
        a(f"s_mov_b32 {s(sW1)}, s57")


def ffn1(nt):
    a.vm_reset()
    a.lg_reset()
    if nt == 3:
        for k in range(3):
            a(f"v_add_u32 v150, {64 * k}, {v(LANE)}")
            a("v_mul_u32_u24 v151, 43691, v150")
            a("v_lshrrev_b32 v151, 19, v151")
            a(f"v_mul_u32_u24 {v(vDMA + k)}, {2752 - 192}, v151")
            a(f"v_lshl_add_u32 {v(vDMA + k)}, v150, 4, {v(vDMA + k)}")
        a(f"v_lshrrev_b32 v150, 5, {v(LANE)}")
        a(f"v_bfe_u32 v151, {v(LANE)}, 2, 2")
        a("v_lshl_add_u32 v150, v150, 3, v151")
        a(f"v_mul_u32_u24 {v(vTR)}, 192, v150")
        a(f"v_bfe_u32 v151, {v(LANE)}, 4, 1")
        a(f"v_lshl_add_u32 {v(vTR)}, v151, 5, {v(vTR)}")
        a(f"v_and_b32 v151, 3, {v(LANE)}")
        a(f"v_lshl_add_u32 {v(vTR)}, v151, 3, {v(vTR)}")
        a(f"v_add_u32 {v(vTR)}, {s(sRING)}, {v(vTR)}")
    else:
        row128(vDMA, 150, 2752, LANE)
        a(f"v_add_u32 {v(vDMA + 1)}, {8 * 2752}, {v(vDMA)}")
        tr_swz(vTR, 150, 151, 1024, LANE)
        a(f"v_xor_b32 {v(vTR + 1)}, 64, {v(vTR)}")
        a(f"v_add_u32 {v(vTR)}, {s(sRING)}, {v(vTR)}")
        a(f"v_add_u32 {v(vTR + 1)}, {s(sRING)}, {v(vTR + 1)}")
    a(f"s_lshl_b32 s56, {s(sKH)}, 7")
    a(f"v_and_b32 v150, 31, {v(LANE)}")
    a("v_lshl_add_u32 v150, v150, 2, s56")
    a(f"v_add_u32 v150, {L_MISC}, v150")
    if OPT["gst"]:
        stamp(1)
    arrive(C_XC)
    spin_lds(C_XC, 12, 154)
    if OPT["gskip"] == 1:
        a("s_branch L_G_end")
    a("s_setprio 3")
    if OPT["w1l2"] == 1:
        l2_prefetch(SRD_A, 44032, 155, 156)
    npre = OPT["w1pre"]
    if npre:
        spin_lds(C_QL, 4, 154)
        for t in range(npre):
            w1_dma(t, nt)
    a.lds(f"ds_read_b32 v153, {v(vL4)} offset:{C_TAG}", "den")
    a.lds(f"ds_read_b32 {v(BF(1, 0))}, v150 offset:{M_DEN}", "den")
    a.lds(f"ds_read_b32 v152, v150 offset:{M_RSTD}", "den")
    a.wait_lg("den")
    a(f"v_readfirstlane_b32 {s(sTAG)}, v153")
    for k in range(nt):
        mfma32(32 * k, AF(1, k), BF(1, 0), None)
    if OPT["gate"]:
        spin_lds(C_KVL, OPT["gate"], 154)
    else:
        spin_lds(C_QL, 4, 154)
    a(f"s_setprio {OPT['gp_f1']}")
    for t in range(npre, 4):
        w1_dma(t, nt)
    if OPT["gfirst"]:
        arrive(C_KVL)
    if not OPT["gst"]:
        stamp(1)

    def reads(t):
        st = t % 2
        out = []
        for k in range(nt):
            for f in range(2):
                if nt == 3:
                    ad, off = vTR, (t % 4) * 3072 + 768 * f + 64 * k
                else:
                    ad, off = vTR + k, (t % 4) * 3072 + 512 * f
                out.append((f"ds_read_b64_tr_b16 {v(AF(st, k) + 2 * f, 2)}, {v(ad)} offset:{off}", ("f", t)))
        out.insert(2, (f"ds_read_b128 {v(BF(st, 0), 4)}, {v(vXA + t % 4)} offset:{1024 * t}", ("f", t)))
        out.insert(3, (f"ds_read_b128 {v(BF(st, 1), 4)}, {v(vXB + t % 4)} offset:{1024 * t}", ("f", t)))
        return out

    a.wait_vm(("w1", 0))
    for x in reads(0):
        a.lds(*x)
    for t in range(16):
        a.wait_lg(("f", t))
        if t + 4 < 16:
            w1_dma(t + 4, nt)
        rd = []
        if t + 1 < 16:
            a.wait_vm(("w1", t + 1))
            rd = reads(t + 1)
        st = t % 2
        pers = [2, 1, 1, 2, 1, 1] if nt == 3 else [2, 1, 2, 1]
        for k in range(nt):
            for sl in range(2):
                per = pers[2 * k + sl]
                for x in rd[:per]:
                    a.lds(*x)
                if rd[:per] and OPT["space"]:
                    a("s_waitcnt lgkmcnt(0)")
                rd = rd[per:]
                mfma32(32 * k + 16 * sl, AF(st, k), BF(st, sl), None if (t == 0 and sl == 1) else 32 * k + 16 * sl)


a(f"s_cmp_eq_u32 {s(sN3)}, 1")
a("s_cbranch_scc0 L_ffn1_2")
ffn1(3)
a("s_branch L_ffn1_done")
a.label("L_ffn1_2")
ffn1(2)
a.label("L_ffn1_done")
if OPT["gskip"] == 3:
    a("s_branch L_G_end")
a(f"s_setprio {OPT['gp_mish']}")
stamp(2)
a.lg_reset()
a.vm_reset()
a(f"v_subrev_u32 v150, {L_MISC}, {v(vL16)}")
a(f"v_add_u32 v151, {s(sRING)}, v150")
for t in range(3):
    for q in range(4):
        a.lds(f"ds_write_b128 v151, {v(32 * t + 16 + 4 * q, 4)} offset:{4096 * t + 1024 * q}")
a(f"s_xor_b32 s56, {s(sU)}, 1")
a("s_mul_i32 s56, s56, 12288")
a(f"s_add_u32 s56, s56, {L_GR}")
a("v_add_u32 v151, s56, v150")
a.wait_lg_all()
arrive(C_G1)
spin_lds(C_G1, 4, 154)
for t in range(3):
    for q in range(4):
        a.lds(f"ds_read_b128 {v(32 * t + 16 + 4 * q, 4)}, v151 offset:{4096 * t + 1024 * q}", ("x", t))
vTA, vDM2, vRES = 128, 130, 132
srd(SRD_A, P_W2, 1376 * 1024)
srd(SRD_B, P_X, 2048 * 1024)
srd(SRD_C, P_WO, 512 * 1024)
srd(SRD_D, P_OUT, 2048 * 1024)
sC, sR = 71, 72
a(f"s_and_b32 {s(sC)}, {s(sU)}, 1")
a(f"s_lshr_b32 {s(sR)}, {s(sU)}, 1")
if OPT["rswap"]:
    a(f"s_xor_b32 {s(sR)}, {s(sR)}, 1")
row128(vDM2, 156, 1024, LANE)
tr_swz(160, 156, 157, 512, LANE)
a(f"s_lshl_b32 s57, {s(sC)}, 6")
a("v_xor_b32 v160, s57, v160")
a(f"s_lshl_b32 {s(sRING)}, {s(sU)}, 14")
a(f"v_add_u32 {v(vTA)}, {s(sRING)}, v160")
a(f"v_xor_b32 {v(vTA + 1)}, 64, {v(vTA)}")
a(f"v_and_b32 v156, 31, {v(LANE)}")
a(f"v_lshrrev_b32 v157, 5, {v(LANE)}")
a("v_lshlrev_b32 v156, 10, v156")
a("v_lshl_add_u32 v161, v157, 4, v156")
a(f"v_lshlrev_b32 v163, 7, {v(LANE)}")
sOUT = 73
a(f"s_lshl_b32 {s(sOUT)}, {s(sG)}, 16")
a(f"s_lshl_b32 s57, {s(sR)}, 15")
a(f"s_add_u32 {s(sOUT)}, {s(sOUT)}, s57")
a(f"s_lshl_b32 s57, {s(sJ)}, 7")
a(f"s_add_u32 {s(sOUT)}, {s(sOUT)}, s57")
a(f"s_lshl_b32 s57, {s(sC)}, 6")
a(f"s_add_u32 {s(sOUT)}, {s(sOUT)}, s57")
NS = 22
sIW, sIA, sB0, sB1, sLO = 70, 63, 74, 75, 62
if OPT["rot"]:
    a(f"s_mul_i32 s57, {s(sJ)}, 3")
    a(f"s_mul_i32 s58, {s(sGQ)}, 5")
    a("s_add_u32 s57, s57, s58")
    a(f"s_cmp_ge_u32 s57, {NS}")
    a(f"s_cselect_b32 s58, {NS}, 0")
    a(f"s_sub_u32 {s(sIW)}, s57, s58")
else:
    a(f"s_mov_b32 {s(sIW)}, 0")
a(f"s_mov_b32 {s(sIA)}, {s(sIW)}")
a(f"s_mul_i32 {s(sLO)}, {s(sU)}, {NS}")
a(f"s_lshl_b32 s61, {s(sJ)}, 7")


def advance(si):
    a(f"s_add_u32 {s(si)}, {s(si)}, 1")
    a(f"s_cmp_eq_u32 {s(si)}, {NS}")
    a(f"s_cselect_b32 {s(si)}, 0, {s(si)}")


def w2_dma(t):
    a(f"s_add_u32 s56, {s(sIW)}, {s(sLO)}")
    a("s_lshl_b32 s56, s56, 14")
    a(f"s_add_u32 m0, {s(sRING)}, {(t % 8) * 2048}")
    a("s_add_u32 s56, s56, s61")
    a.vmem(f"buffer_load_dwordx4 {v(vDM2)}, {s(SRD_A, 4)}, s56 offen lds", ("w2", t))
    a("s_add_u32 m0, m0, 0x400")
    a("s_add_u32 s56, s56, 0x2000")
    a.vmem(f"buffer_load_dwordx4 {v(vDM2)}, {s(SRD_A, 4)}, s56 offen lds", ("w2", t))
    advance(sIW)


def wo_dma(slot):
    a(f"s_lshl_b32 s56, {s(sU)}, 17")
    a(f"s_add_u32 m0, {s(sRING)}, {slot * 2048}")
    a("s_add_u32 s56, s56, s61")
    a(f"s_add_u32 s56, s56, {slot * 16384}")
    a.vmem(f"buffer_load_dwordx4 {v(vDM2)}, {s(SRD_C, 4)}, s56 offen lds", ("wo", slot))
    a("s_add_u32 m0, m0, 0x400")
    a("s_add_u32 s56, s56, 0x2000")
    a.vmem(f"buffer_load_dwordx4 {v(vDM2)}, {s(SRD_C, 4)}, s56 offen lds", ("wo", slot))


for t in range(4):
    w2_dma(t)
for k in range(2):
    a(f"buffer_load_dwordx4 {v(vRES + 4 * k, 4)}, v161, {s(SRD_B, 4)}, {s(sOUT)} offen offset:{32 * k}")
if OPT["sent"]:
    a.comment("mark this member's o slots as not yet written; the activation hand-off word covers these stores")
    for i in range(4):
        a(f"v_mov_b32 v{140 + i}, -1")
    a(f"s_lshl_b32 s56, {s(sG)}, 16")
    a(f"s_lshl_b32 s57, {s(sJ)}, 12")
    a("s_add_u32 s56, s56, s57")
    a(f"s_lshl_b32 s57, {s(sU)}, 10")
    a("s_add_u32 s56, s56, s57")
    a(f"s_add_u32 s56, s56, {WS_O}")
    a("s_add_u32 s57, s56, 0x8000")
    a(f"buffer_store_dwordx4 v[140:143], v150, {s(SRD_WS, 4)}, s56 offen sc1")
    a(f"buffer_store_dwordx4 v[140:143], v150, {s(SRD_WS, 4)}, s57 offen sc1")
a(f"v_mul_f32 v154, {fbits(LOG2E)}, v152")


def act_addr():
    a(f"s_lshl_b32 s56, {s(sG)}, 1")
    a(f"s_add_u32 s56, s56, {s(sKH)}")
    a("s_mul_i32 s56, s56, 86")
    a(f"s_lshl_b32 s57, {s(sNT)}, 1")
    a("s_add_u32 s56, s56, s57")
    a("s_lshl_b32 s56, s56, 10")
    a(f"s_add_u32 s56, s56, {WS_ACT}")


act_addr()
for t in range(3):
    if t == 2:
        a(f"s_cmp_eq_u32 {s(sN3)}, 1")
        a("s_cbranch_scc0 L_mish_done")
    if t == 1:
        if OPT["w2l2"]:
            l2_prefetch(SRD_A, 44032, 158, 159)
            l2_prefetch(SRD_C, 16384, 158, 159)
        act_addr()
    a.wait_lg(("x", t))
    H, U, W_ = 32 * t, 32 * t + 16, 96
    for i in range(8):
        a(f"v_pk_add_f32 {v(H + 2 * i, 2)}, {v(H + 2 * i, 2)}, {v(U + 2 * i, 2)}")
    for i in range(8):
        a(f"v_pk_mul_f32 {v(U + 2 * i, 2)}, {v(H + 2 * i, 2)}, v[154:155] op_sel_hi:[1,0]")
    for i in range(16):
        a(f"v_exp_f32 {v(U + i)}, {v(U + i)}")
    for i in range(8):
        a(f"v_pk_mul_f32 {v(H + 2 * i, 2)}, {v(H + 2 * i, 2)}, v[152:153] op_sel_hi:[1,0]")
    for i in range(8):
        a(f"v_pk_add_f32 {v(W_ + 2 * i, 2)}, {v(U + 2 * i, 2)}, 2.0 op_sel_hi:[1,0]")
    for i in range(8):
        a(f"v_pk_fma_f32 {v(U + 2 * i, 2)}, {v(U + 2 * i, 2)}, {v(W_ + 2 * i, 2)}, 2.0 op_sel_hi:[1,1,0]")
    for i in range(16):
        a(f"v_rcp_f32 {v(U + i)}, {v(U + i)}")
    for i in range(8):
        a(f"v_pk_fma_f32 {v(U + 2 * i, 2)}, {v(U + 2 * i, 2)}, -2.0, 1.0 op_sel_hi:[1,0,0]")
    for i in range(8):
        a(f"v_pk_mul_f32 {v(H + 2 * i, 2)}, {v(H + 2 * i, 2)}, {v(U + 2 * i, 2)}")
    for i in range(8):
        a(f"v_cvt_pk_bf16_f32 {v(U + i)}, {v(H + 2 * i)}, {v(H + 2 * i + 1)}")
    soff = "s56" if t < 2 else "s57"
    if t == 2:
        a("s_add_u32 s57, s56, 0x1000")
    for u in range(2):
        a.vmem(f"buffer_store_dwordx4 {v(U + 4 * u, 4)}, v150, {s(SRD_WS, 4)}, {soff} offen offset:{(2048 * t + 1024 * u) % 4096} sc1")
a.label("L_mish_done")
stamp(3)
if OPT["gskip"] == 2:
    a("s_branch L_G_end")
a.wait_vm_all()
if OPT["sent"]:
    arrive(C_O1)
    if not OPT["fin0g"]:
        arrive(C_O0)
arrive_rtn(C_ACT, 157, 58)
a("s_cmp_eq_u32 s58, 3")
a("s_cbranch_scc0 L_G_noact")
set_flag(0, 157)
a.label("L_G_noact")
for t in range(4, 8):
    w2_dma(t)
if OPT["fin0g"] == 2:
    finalize(0, sU, lane8=LANE, T=64)
a(f"s_lshl_b32 s57, {s(sG)}, 1")
a(f"s_add_u32 s58, s57, {s(sR)}")
a(f"s_mul_i32 {s(sB0)}, s58, {86 * 1024}")
a("s_xor_b32 s58, s58, 1")
a(f"s_mul_i32 {s(sB1)}, s58, {86 * 1024}")
a(f"s_add_u32 {s(sB0)}, {s(sB0)}, {WS_ACT}")
a(f"s_add_u32 {s(sB1)}, {s(sB1)}, {WS_ACT}")
sFL = 60
a(f"s_lshl_b32 {s(sFL)}, {s(sG)}, 10")
a(f"s_add_u32 {s(sFL)}, {s(sFL)}, {WS_FLAG}")
poll_flags(s(sFL), 8, 157, 163)
stamp(4)
a.vm_reset()
a.lg_reset()
BQ = lambda t, sl: 64 + 8 * (t % 6) + 4 * sl
AF2 = lambda st, k: 112 + 8 * st + 4 * k


def act_loads(t):
    a(f"s_add_u32 s56, {s(sIA)}, {s(sLO)}")
    a("s_lshl_b32 s57, s56, 10")
    a("s_cmp_lt_u32 s56, 86")
    a("s_cselect_b32 s57, s57, 0x10000000")
    a(f"s_add_u32 s56, s57, {s(sB0)}")
    a(f"s_add_u32 s57, s57, {s(sB1)}")
    for sl in range(2):
        a.vmem(f"buffer_load_dwordx4 {v(BQ(t, sl), 4)}, v150, {s(SRD_WS, 4)}, s{56 + sl} offen sc1", ("act", t))
    advance(sIA)


def w2_reads(t):
    return [(f"ds_read_b64_tr_b16 {v(AF2(t % 2, k) + 2 * f, 2)}, {v(vTA + k)} offset:{(t % 8) * 2048 + 1024 * f}", ("a2", t))
            for k in range(2) for f in range(2)]


for t in range(6):
    act_loads(t)
for x in w2_reads(0):
    a.lds(*x)
for k in (0, 4):
    a(f"v_permlane32_swap_b32 {v(vRES + k)}, {v(vRES + k + 2)}")
    a(f"v_permlane32_swap_b32 {v(vRES + k + 1)}, {v(vRES + k + 3)}")
for i in range(8):
    a(f"v_lshlrev_b32 {v(2 * i)}, 16, {v(vRES + i)}")
    a(f"v_and_b32 {v(2 * i + 1)}, 0xffff0000, {v(vRES + i)}")
a(f"s_setprio {OPT['gp_f2']}")
for t in range(NS):
    a.wait_lg(("a2", t))
    if t + 8 < NS:
        w2_dma(t + 8)
    else:
        wo_dma(t % 8)
    a.wait_vm(("act", t), ("w2", t + 1))
    rd = w2_reads(t + 1) if t + 1 < NS else []
    for sl in range(4):
        if rd:
            a.lds(*rd[sl])
            if OPT["space"]:
                a("s_waitcnt lgkmcnt(0)")
        mfma32(16 * sl, AF2(t % 2, sl & 1), BQ(t, sl >> 1), None if (t == 0 and sl > 0) else 16 * sl)
    if t + 6 < NS:
        act_loads(t + 6)
a(f"s_setprio {OPT['gp_tail']}")
stamp(5)
if OPT["gskip"] == 4:
    a("s_branch L_G_end")
for sl in range(1, 4):
    a(f"s_xor_b32 s56, {s(sU)}, {sl}")
    a("s_mul_i32 s56, s56, 12288")
    a(f"s_add_u32 s56, s56, {L_GR + 4096 * (sl - 1)}")
    a(f"v_add_u32 v{151 + sl}, s56, v150")
for sl in range(1, 4):
    for q in range(4):
        a.lds(f"ds_write_b128 v{151 + sl}, {v(16 * sl + 4 * q, 4)} offset:{1024 * q}")
a(f"s_mul_i32 s56, {s(sU)}, 12288")
a(f"s_add_u32 s56, s56, {L_GR}")
a("v_add_u32 v151, s56, v150")
a.wait_lg_all()
a.wait_vm_all()
arrive(C_G2)
spin_lds(C_G2, 4, 157)
for sl in range(1, 4):
    for q in range(4):
        a.lds(f"ds_read_b128 {v(16 * sl + 4 * q, 4)}, v151 offset:{4096 * (sl - 1) + 1024 * q}", ("y", sl))
for sl in range(1, 4):
    a.wait_lg(("y", sl))
    for i in range(8):
        a(f"v_pk_add_f32 {v(2 * i, 2)}, {v(2 * i, 2)}, {v(16 * sl + 2 * i, 2)}")
if OPT["fin0g"] == 1:
    finalize(0, sU, lane8=LANE)
stamp(6)
a.lg_reset()
AF3 = lambda h: 144 + 4 * (h % 3)


def wo_reads(h):
    for f in range(2):
        a.lds(f"ds_read_b64_tr_b16 {v(AF3(h) + 2 * f, 2)}, v160 offset:{2048 * h + 1024 * f}", ("wo", h))


a(f"s_lshl_b32 s62, {s(sG)}, 16")
a(f"s_lshl_b32 s59, {s(sR)}, 15")
a("s_add_u32 s62, s62, s59")
a(f"s_add_u32 s62, s62, {WS_O}")
a(f"v_mov_b32 v162, v150")
if OPT["sent"]:
    a(f"v_mov_b32 v159, v151")
    for q in range(4):
        a(f"ds_write_b128 v159, {v(4 * q, 4)} offset:{1024 * q}")
    a(f"v_lshlrev_b32 v158, 10, {v(LANE)}")
    a("s_add_u32 s57, s62, 1020")
    a("s_mov_b32 s63, 0x1000")
    lo, done = a.newlabel("can"), a.newlabel("canok")
    a(f"s_mov_b32 {s(sSPIN)}, 0x8000")
    a("s_mov_b32 exec_hi, 0")
    a.label(lo)
    a(f"buffer_load_dword v157, v158, {s(SRD_WS, 4)}, s57 offen sc1")
    a("s_waitcnt vmcnt(0)")
    a("v_cmp_eq_u32 vcc, -1, v157")
    a(f"s_cbranch_vccz {done}")
    a(f"s_sleep {OPT['osleep']}")
    a(f"s_sub_u32 {s(sSPIN)}, {s(sSPIN)}, 1")
    a(f"s_cbranch_scc0 {lo}")
    a.label(done)
    a("s_mov_b64 exec, -1")
else:
    a(f"s_lshl_b32 s57, {s(sR)}, 15")
    a(f"s_add_u32 s57, s57, {s(sFL)}")
    a("s_add_u32 s57, s57, 0x8000")
    poll_flags("s57", 8, 157, 163)
stamp(7)
a.label("L_oproj")
a("s_mov_b32 s58, s62")
a.vm_reset()
a.lg_reset()
for h in range(32):
    a.vmem(f"buffer_load_dwordx4 {v(16 + 4 * h, 4)}, v162, {s(SRD_WS, 4)}, s58 offen offset:{1024 * (h % 4)} sc1", ("o", h))
    if h % 4 == 3 and h < 31:
        a("s_add_u32 s58, s58, 0x1000")
wo_reads(0)
wo_reads(1)
a("v_mov_b32 v157, 0")
for h in range(32):
    if h + 2 < 32:
        wo_reads(h + 2)
    a.wait_lg(("wo", h))
    a.wait_vm(("o", h))
    mfma32(0, AF3(h), 16 + 4 * h, 0)
    if OPT["sent"]:
        a(f"v_max3_u32 v157, v157, {v(16 + 4 * h)}, {v(17 + 4 * h)}")
        a(f"v_max3_u32 v157, v157, {v(18 + 4 * h)}, {v(19 + 4 * h)}")
if OPT["sent"]:
    a("v_cmp_eq_u32 vcc, -1, v157")
    a("s_cbranch_vccz L_oproj_ok")
    a("s_sub_u32 s63, s63, 1")
    a("s_cbranch_scc1 L_oproj_ok")
    a("s_nop 15")
    for q in range(4):
        a(f"ds_read_b128 {v(4 * q, 4)}, v159 offset:{1024 * q}")
    a("s_waitcnt lgkmcnt(0)")
    a("s_branch L_oproj")
    a.label("L_oproj_ok")
for i in range(8):
    a(f"v_cvt_pk_bf16_f32 {v(16 + i)}, {v(2 * i)}, {v(2 * i + 1)}")
for k in (0, 4):
    a(f"v_permlane32_swap_b32 {v(16 + k)}, {v(18 + k)}")
    a(f"v_permlane32_swap_b32 {v(17 + k)}, {v(19 + k)}")
for k in range(2):
    a(f"buffer_store_dwordx4 {v(16 + 4 * k, 4)}, v161, {s(SRD_D, 4)}, {s(sOUT)} offen offset:{32 * k}{['', ' sc1', ' nt', ' sc0 sc1'][OPT['ost']]}")
if OPT["stamps"] == 3:
    a("s_waitcnt vmcnt(0)")
stamp(8, last=True)
a(f"s_xor_b32 s56, {s(sU)}, {2 if OPT['rswap'] else 0}")
a("s_or_b32 s56, s56, s2")
a("s_cbranch_scc1 L_G_end")
for i in range(8):
    a(f"s_mov_b32 s57, {WS_FLAG + 4096 * i}")
    poll_flags("s57", 32, 157, 163)
a(f"v_mov_b32 v157, {s(sTAG)}")
a(f"s_mov_b32 s57, {WS_E}")
a("s_mov_b64 exec, 1")
a(f"buffer_store_dword v157, off, {s(SRD_WS, 4)}, s57 sc1")
a.label("L_G_end")
stamps_out(9)
a.label("L_end")
a("s_endpgm")

body = hazard_pass(a.lines, verbose=True)
HEAD = open(os.path.join(os.path.dirname(os.path.abspath(__file__)), "..", "cdna_kernels", NAME + ".s.ref")).read().split("\n")
hdr = [l for l in HEAD if l.startswith(";") and "@launch" not in l and "; v1" not in l]
hdr = hdr[:13]
out = "\n".join(hdr) + "\n"
out += f"; @launch grid=(256,1,1) block=(768,1,1) lds={L_END}\n"
out += f""".amdgcn_target "amdgcn-amd-amdhsa--gfx950"
.text
.globl {NAME}_kernel
.p2align 8
.type {NAME}_kernel,@function
{NAME}_kernel:
"""
out += render(body)
out += f""".section .rodata,"a"
.p2align 6
.amdhsa_kernel {NAME}_kernel
  .amdhsa_next_free_vgpr 168
  .amdhsa_next_free_sgpr 102
  .amdhsa_accum_offset 168
  .amdhsa_group_segment_fixed_size 0
  .amdhsa_kernarg_size 96
  .amdhsa_user_sgpr_count 2
  .amdhsa_user_sgpr_kernarg_segment_ptr 1
  .amdhsa_system_sgpr_workgroup_id_x 1
.end_amdhsa_kernel
"""
open(sys.argv[1], "w").write(out)
print("lines", len(body), "LDS", L_END)
```
